```python
import torch

def _softmax(x, axis=-1):
    return torch.softmax(x, dim=axis)

def _gelu(x):
    return torch.nn.functional.gelu(x, approximate='tanh')

def _silu(x):
    return torch.nn.functional.silu(x)

def _sigmoid(x):
    return torch.sigmoid(x)

def _layernorm(x, axis=-1, eps=1e-05):
    m = x.mean(dim=axis, keepdim=True)
    v = x.var(dim=axis, keepdim=True, unbiased=False)
    return (x - m) / torch.sqrt(v + eps)

def _scatter_add(tgt, idx, src, axis=0):
    return tgt.clone().index_add_(axis, idx, src)

def _segment_sum(src, seg, n):
    out = torch.zeros((n,) + src.shape[1:], dtype=src.dtype)
    return out.index_add_(0, seg, src)

def _pad(x, pw):
    flat = tuple((v for pair in reversed(pw) for v in pair))
    return torch.nn.functional.pad(x, flat)
kernel_name = 'adaLN_cond__mha_block__glu_gated_glu__prompt'

def setup_inputs():

    _w = lambda a: (lambda t: t.to(torch.bfloat16) if t.is_floating_point() else t)(torch.as_tensor(a))

    def _A_setup():
        B, S, D, H = (1, 2048, 512, 32)
        return {'x': _w((lambda *s: torch.randn(*s, dtype=torch.bfloat16) * 0.05)(B, S, D)), 'wqkv': _w((lambda *s: torch.randn(*s, dtype=torch.bfloat16) * 0.05)(D, 3 * D)), 'wo': _w((lambda *s: torch.randn(*s, dtype=torch.bfloat16) * 0.05)(D, D))}
    _A_in = _A_setup()

    def _B_setup():
        B, S, D, F = (1, 2048, 512, 1376)
        return {'x': _w((lambda *s: torch.randn(*s, dtype=torch.bfloat16) * 0.05)(B, S, D)), 'w_gate': _w((lambda *s: torch.randn(*s, dtype=torch.bfloat16) * 0.05)(D, F)), 'w_up': _w((lambda *s: torch.randn(*s, dtype=torch.bfloat16) * 0.05)(D, F)), 'w_down': _w((lambda *s: torch.randn(*s, dtype=torch.bfloat16) * 0.05)(F, D))}
    _B_in = _B_setup()
    return {'A_x': _A_in['x'], 'A_wqkv': _A_in['wqkv'], 'A_wo': _A_in['wo'], 'B_x': _B_in['x'], 'B_w_gate': _B_in['w_gate'], 'B_w_up': _B_in['w_up'], 'B_w_down': _B_in['w_down'], 'c': _w((lambda *s: torch.randn(*s, dtype=torch.bfloat16) * 0.1)(1, 512) * 8.0), 'w_mod': _w((lambda *s: torch.randn(*s, dtype=torch.bfloat16) * 0.1)(512, 6 * 512) * 512 ** (-0.5) * 8.0)}

def reference(A_x, A_wqkv, A_wo, B_x, B_w_gate, B_w_up, B_w_down, c, w_mod):

    def _A_ref(x, wqkv, wo):
        B, S, D = x.shape
        H = 32
        Dh = D // H
        qkv = (lambda x, *d: x.permute(*d))((x @ wqkv).reshape(B, S, 3, H, Dh), 2, 0, 3, 1, 4)
        q, k, v = (qkv[0], qkv[1], qkv[2])
        scores = torch.einsum('bhqd,bhkd->bhqk', q, k) * Dh ** (-0.5)
        p = _softmax(scores, axis=-1)
        o = torch.einsum('bhqk,bhkd->bhqd', p, v)
        return (lambda x, *d: x.permute(*d))(o, 0, 2, 1, 3).reshape(B, S, D) @ wo

    def _B_ref(x, w_gate, w_up, w_down):
        g = torch.einsum('bsd,df->bsf', x, w_gate)
        u = torch.einsum('bsd,df->bsf', x, w_up)
        h = _sigmoid(g) * u
        return torch.einsum('bsf,fd->bsd', h, w_down)
    x = A_x
    mod = (_silu(c) @ w_mod).reshape(c.shape[0], 6, 1, -1)
    sa, ca, ga, sb, cb, gb = (mod[:, 0].clone(), mod[:, 1].clone(), mod[:, 2].clone(), mod[:, 3].clone(), mod[:, 4].clone(), mod[:, 5].clone())
    h = _layernorm(x, axis=-1) * (1 + ca) + sa
    x = x + ga * _A_ref(h, A_wqkv, A_wo)
    h = _layernorm(x, axis=-1) * (1 + cb) + sb
    x = x + gb * _B_ref(h, B_w_gate, B_w_up, B_w_down)
    return x
```

```python
class Kern:
    def __init__(self, name, grid, block, lds, nvgpr, nagpr=0):
        self.name = name; self.grid = grid; self.block = block; self.lds = lds
        self.nvgpr = nvgpr; self.nagpr = nagpr
        self.L = []
        self.uid = 0
    def __call__(self, s):
        for line in s.strip().split('\n'):
            self.L.append('  ' + line.strip())
    def label(self, l):
        self.L.append(f'{l}:')
    def newlabel(self, base):
        self.uid += 1
        return f'{self.name}_{base}_{self.uid}'
    def text(self):
        hdr = [f'.globl {self.name}', '.p2align 8', f'.type {self.name},@function', f'{self.name}:']
        return '\n'.join(hdr + self.L) + '\n'
    def desc(self):
        acc = (self.nvgpr + 3) // 4 * 4
        nfv = acc + self.nagpr
        return f'''.p2align 6
.amdhsa_kernel {self.name}
  .amdhsa_next_free_vgpr {nfv}
  .amdhsa_next_free_sgpr 102
  .amdhsa_accum_offset {acc}
  .amdhsa_group_segment_fixed_size 0
  .amdhsa_kernarg_size 96
  .amdhsa_user_sgpr_count 2
  .amdhsa_user_sgpr_kernarg_segment_ptr 1
  .amdhsa_system_sgpr_workgroup_id_x 1
.end_amdhsa_kernel
'''
def v(i, n=1):
    return f'v{i}' if n == 1 else f'v[{i}:{i+n-1}]'
def a(i, n=1):
    return f'a{i}' if n == 1 else f'a[{i}:{i+n-1}]'
def s(i, n=1):
    return f's{i}' if n == 1 else f's[{i}:{i+n-1}]'

KA = dict(x=0, wqkv=8, wo=16, wg=32, wu=40, wd=48, c=56, wmod=64, out=72, dbg=80, ws=88)

def srds(k, specs):
    for (sr, nm, off, size) in specs:
        k(f's_load_dwordx2 {s(sr,2)}, s[0:1], {KA[nm]}')
    for (sr, nm, off, size) in specs:
        k(f's_mov_b32 {s(sr+2)}, {size}')
        k(f's_mov_b32 {s(sr+3)}, 0x00020000')
    k('s_waitcnt lgkmcnt(0)')
    for (sr, nm, off, size) in specs:
        if off:
            k(f's_add_u32 {s(sr)}, {s(sr)}, {off}')
            k(f's_addc_u32 {s(sr+1)}, {s(sr+1)}, 0')

HEADER = '''; Kernarg layout for this problem (96 bytes, ptrs only, base s[0:1]):
'''
def emit(kerns, path):
    out = HEADER
    for k in kerns:
        out += f'; @launch kernel={k.name} grid=({k.grid},1,1) block=({k.block},1,1) lds={k.lds}\n'
    out += '.amdgcn_target "amdgcn-amd-amdhsa--gfx950"\n.text\n'
    for k in kerns:
        out += k.text()
    out += '.section .rodata,"a"\n'
    for k in kerns:
        out += k.desc()
    open(path, 'w').write(out)
```

```python
from fw import *
from layout import *
LOG2E = 1.4426950408889634

def reduce4(k, R, T, op='v_add_f32'):
    for rot in (8, 4, 2, 1):
        for i in range(4):
            k(f'{op}_dpp {v(R[i])}, {v(R[i])}, {v(R[i])} row_ror:{rot} row_mask:0xf bank_mask:0xf')
    for sw in ('v_permlane16_swap_b32', 'v_permlane32_swap_b32'):
        for i in range(4):
            k(f'v_mov_b32 {v(T[i])}, {v(R[i])}')
        for i in range(4):
            k(f'{sw} {v(R[i])}, {v(T[i])}')
        for i in range(4):
            k(f'{op} {v(R[i])}, {v(R[i])}, {v(T[i])}')

def gen_k1():
    NG, NL, NR = 48, 128, 118
    k = Kern('prep_kernel', NG + NL + NR, 256, 8192, 112)
    k(f's_cmp_ge_u32 s2, {NG+NL+NR}')
    k('s_cbranch_scc1 prep_end')
    k(f's_cmp_ge_u32 s2, {NG+NL}')
    k('s_cbranch_scc1 prep_relayout')
    k(f's_cmp_ge_u32 s2, {NG}')
    k('s_cbranch_scc1 prep_ln')
    srds(k, [(8, 'c', 0, 1024), (12, 'wmod', 0, 512 * 6144), (16, 'ws', OFF_MOD, 3072 * 4)])
    k('v_and_b32 v1, 7, v0')
    k('v_lshrrev_b32 v2, 3, v0')
    k('v_lshlrev_b32 v3, 5, v2')
    k('buffer_load_dwordx4 v[8:11], v3, s[8:11], 0 offen')
    k('buffer_load_dwordx4 v[12:15], v3, s[8:11], 0 offen offset:16')
    k('v_mul_u32_u24 v4, 0x18000, v2')
    k('v_lshl_add_u32 v4, v1, 4, v4')
    k('s_lshl_b32 s20, s2, 7')
    for p in range(16):
        k(f'buffer_load_dwordx4 {v(32+4*p,4)}, v4, s[12:15], s20 offen')
        k('s_add_u32 s20, s20, 6144')
    k('s_waitcnt vmcnt(16)')
    for p in range(16):
        src = 8 + p // 2
        d = 16 + p
        if p % 2 == 0:
            k(f'v_lshlrev_b32 {v(d)}, 16, {v(src)}')
        else:
            k(f'v_and_b32 {v(d)}, 0xffff0000, {v(src)}')
    for p in range(16):
        k(f'v_mul_f32 {v(96+p)}, {-LOG2E}, {v(16+p)}')
    for p in range(16):
        k(f'v_exp_f32 {v(96+p)}, {v(96+p)}')
    for p in range(16):
        k(f'v_add_f32 {v(96+p)}, 1.0, {v(96+p)}')
    for p in range(16):
        k(f'v_rcp_f32 {v(96+p)}, {v(96+p)}')
    for p in range(16):
        k(f'v_mul_f32 {v(16+p)}, {v(16+p)}, {v(96+p)}')
    for p in range(16):
        k(f'v_cvt_pk_bf16_f32 {v(16+p)}, {v(16+p)}, {v(16+p)}')
    for p in range(16):
        k(f'v_lshlrev_b32 {v(16+p)}, 16, {v(16+p)}')
    for i in range(8):
        k(f'v_mov_b32 {v(96+i)}, 0')
    for p in range(16):
        k(f's_waitcnt vmcnt({15-p})')
        for i in range(4):
            w = 32 + 4 * p + i
            k(f'v_lshlrev_b32 v104, 16, {v(w)}')
            k(f'v_and_b32 v105, 0xffff0000, {v(w)}')
            k(f'v_fmac_f32 {v(96+2*i)}, v104, {v(16+p)}')
            k(f'v_fmac_f32 {v(97+2*i)}, v105, {v(16+p)}')
    k('v_lshlrev_b32 v5, 5, v0')
    k('ds_write_b128 v5, v[96:99]')
    k('ds_write_b128 v5, v[100:103] offset:16')
    k('s_waitcnt lgkmcnt(0)')
    k('s_barrier')
    k('v_cmp_gt_u32 vcc, 64, v0')
    k('s_and_saveexec_b64 s[22:23], vcc')
    k('s_cbranch_execz prep_end')
    k('v_lshlrev_b32 v5, 2, v0')
    for r in range(32):
        k(f'ds_read_b32 {v(32+r)}, v5 offset:{r*256}')
    k('s_waitcnt lgkmcnt(0)')
    n = 32
    while n > 1:
        for i in range(n // 2):
            k(f'v_add_f32 {v(32+i)}, {v(32+i)}, {v(32+i+n//2)}')
        n //= 2
    k('v_cvt_pk_bf16_f32 v32, v32, v32')
    k('v_lshlrev_b32 v32, 16, v32')
    k('v_add_f32 v33, 1.0, v32')
    k('v_cvt_pk_bf16_f32 v33, v33, v33')
    k('v_lshlrev_b32 v33, 16, v33')
    k('s_lshr_b32 s21, s2, 3')
    k('s_cmp_eq_u32 s21, 1')
    k('s_cselect_b32 s24, 1, 0')
    k('s_cmp_eq_u32 s21, 4')
    k('s_cselect_b32 s24, 1, s24')
    k('s_cmp_eq_u32 s24, 1')
    k('s_cbranch_scc0 prep_g1')
    k('v_mov_b32 v32, v33')
    k.label('prep_g1')
    k('s_lshl_b32 s20, s2, 8')
    k('buffer_store_dword v32, v5, s[16:19], s20 offen')
    k('s_endpgm')
    k.label('prep_ln')
    srds(k, [(8, 'x', 0, 2048 * 1024), (16, 'ws', OFF_XN, 2048 * 1024)])
    k('v_and_b32 v1, 63, v0')
    k('v_lshrrev_b32 v2, 6, v0')
    k('s_nop 0')
    k('v_readfirstlane_b32 s20, v2')
    k(f's_sub_u32 s21, s2, {NG}')
    k('s_lshl_b32 s21, s21, 4')
    k('s_lshl_b32 s20, s20, 2')
    k('s_add_u32 s21, s21, s20')
    k('s_lshl_b32 s22, s21, 10')
    k('v_lshlrev_b32 v3, 4, v1')
    for i in range(4):
        k(f'buffer_load_dwordx4 {v(8+4*i,4)}, v3, s[8:11], s22 offen offset:{i*1024}')
    k('v_lshrrev_b32 v4, 1, v1')
    k('v_lshlrev_b32 v4, 10, v4')
    k('v_and_b32 v5, 1, v1')
    k('v_lshl_or_b32 v4, v5, 9, v4')
    k('s_lshr_b32 s23, s21, 5')
    k('s_lshl_b32 s23, s23, 15')
    k('s_and_b32 s24, s21, 31')
    k('s_lshl_b32 s24, s24, 4')
    k('s_add_u32 s23, s23, s24')
    R = [56, 57, 58, 59]; T = [60, 61, 62, 63]
    for i in range(4):
        k(f's_waitcnt vmcnt({3-i})')
        for j in range(4):
            k(f'v_lshlrev_b32 {v(24+8*i+2*j)}, 16, {v(8+4*i+j)}')
            k(f'v_and_b32 {v(25+8*i+2*j)}, 0xffff0000, {v(8+4*i+j)}')
        b = 24 + 8 * i
        k(f'v_add_f32 {v(R[i])}, {v(b)}, {v(b+1)}')
        k(f'v_add_f32 {v(T[i])}, {v(b+2)}, {v(b+3)}')
        k(f'v_add_f32 v64, {v(b+4)}, {v(b+5)}')
        k(f'v_add_f32 v65, {v(b+6)}, {v(b+7)}')
        k(f'v_add_f32 {v(R[i])}, {v(R[i])}, {v(T[i])}')
        k(f'v_add_f32 v64, v64, v65')
        k(f'v_add_f32 {v(R[i])}, {v(R[i])}, v64')
    k('s_nop 1')
    reduce4(k, R, T)
    for i in range(4):
        k(f'v_mul_f32 {v(R[i])}, {1.0/512}, {v(R[i])}')
    for i in range(4):
        b = 24 + 8 * i
        for j in range(8):
            k(f'v_sub_f32 {v(b+j)}, {v(b+j)}, {v(R[i])}')
    for i in range(4):
        b = 24 + 8 * i
        k(f'v_mul_f32 {v(R[i])}, {v(b)}, {v(b)}')
        k(f'v_mul_f32 {v(T[i])}, {v(b+1)}, {v(b+1)}')
        for j in range(2, 8, 2):
            k(f'v_fmac_f32 {v(R[i])}, {v(b+j)}, {v(b+j)}')
            k(f'v_fmac_f32 {v(T[i])}, {v(b+j+1)}, {v(b+j+1)}')
        k(f'v_add_f32 {v(R[i])}, {v(R[i])}, {v(T[i])}')
    k('s_nop 1')
    reduce4(k, R, T)
    k('v_mov_b32 v64, 0x3727c5ac')
    for i in range(4):
        k(f'v_fmac_f32 v64, {1.0/512}, {v(R[i])}') if False else None
        k(f'v_fma_f32 {v(R[i])}, {v(R[i])}, {v(66)}, v64') if False else None
    k(f'v_mov_b32 v65, {1.0/512}')
    for i in range(4):
        k(f'v_fma_f32 {v(R[i])}, {v(R[i])}, v65, v64')
    for i in range(4):
        k(f'v_rsq_f32 {v(R[i])}, {v(R[i])}')
    k('s_nop 0')
    for i in range(4):
        b = 24 + 8 * i
        for j in range(8):
            k(f'v_mul_f32 {v(b+j)}, {v(b+j)}, {v(R[i])}')
        for j in range(4):
            k(f'v_cvt_pk_bf16_f32 {v(8+4*i+j)}, {v(b+2*j)}, {v(b+2*j+1)}')
        k(f'buffer_store_dwordx4 {v(8+4*i,4)}, v4, s[16:19], s23 offen offset:{i*16}')
    k('s_endpgm')
    k.label('prep_relayout')
    k(f's_sub_u32 s21, s2, {NG+NL}')
    k('s_cmp_ge_u32 s21, 32')
    k('s_cbranch_scc1 prep_rl_wd')
    srds(k, [(8, 'wo', 0, 512 * 1024), (16, 'ws', OFF_WOT, 512 * 1024)])
    k('s_mov_b32 s25, 32')
    k('s_branch prep_rl_go')
    k.label('prep_rl_wd')
    srds(k, [(8, 'wd', 0, 1376 * 1024), (16, 'ws', OFF_WDT, 1376 * 1024)])
    k('s_mov_b32 s25, 86')
    k('s_sub_u32 s21, s21, 32')
    k.label('prep_rl_go')
    k('v_and_b32 v1, 63, v0')
    k('v_lshrrev_b32 v2, 6, v0')
    k('v_lshrrev_b32 v3, 5, v1')
    k('v_and_b32 v4, 31, v1')
    k('v_lshlrev_b32 v5, 12, v3')
    k('v_lshl_add_u32 v5, v2, 8, v5')
    k('v_lshl_add_u32 v5, v4, 1, v5')
    k('s_lshl_b32 s22, s21, 14')
    k('s_add_u32 s23, s22, 8192')
    for i in range(4):
        for j in range(8):
            so = 's22' if j < 4 else 's23'
            k(f'buffer_load_ushort {v(32+8*i+j)}, v5, s[8:11], {so} offen offset:{(j%4)*1024+i*64}')
    k('v_readfirstlane_b32 s20, v2')
    k('s_lshl_b32 s20, s20, 2')
    k('s_mul_i32 s20, s20, s25')
    k('s_add_u32 s20, s20, s21')
    k('s_lshl_b32 s20, s20, 10')
    k('s_lshl_b32 s26, s25, 10')
    k('v_lshlrev_b32 v6, 4, v1')
    for i in range(4):
        k(f's_waitcnt vmcnt({24-8*i})')
        for j in range(4):
            k(f'v_lshl_or_b32 {v(8+4*i+j)}, {v(32+8*i+2*j+1)}, 16, {v(32+8*i+2*j)}')
        k(f'buffer_store_dwordx4 {v(8+4*i,4)}, v6, s[16:19], s20 offen')
        k('s_add_u32 s20, s20, s26')
    k.label('prep_end')
    k('s_endpgm')
    return k
```

```python
from fw import *
from layout import *
LOG2E = 1.4426950408889634

def div12(k, q, row, c, tmp):
    k(f'v_mul_u32_u24 {v(row)}, 0xaaab, {v(q)}')
    k(f'v_lshrrev_b32 {v(row)}, 19, {v(row)}')
    k(f'v_mul_u32_u24 {v(tmp)}, 12, {v(row)}')
    k(f'v_sub_u32 {v(c)}, {v(q)}, {v(tmp)}')

def gen_k2():
    LW = 0; LM = 98304
    k = Kern('qkv_kernel', 256, 256, 98304 + 4096, 256)
    k('s_cmp_ge_u32 s2, 256')
    k('s_cbranch_scc1 qkv_end')
    srds(k, [(8, 'wqkv', 0, 512 * 3072), (12, 'ws', OFF_XN, 2048 * 1024), (16, 'ws', OFF_MOD, 4096),
             (20, 'ws', OFF_Q, 3 * 0x200000)])
    k('s_and_b32 s24, s2, 7')
    k('s_lshr_b32 s25, s2, 3')
    k('s_lshr_b32 s26, s24, 1')
    k('s_lshl_b32 s26, s26, 2')
    k('s_and_b32 s27, s25, 3')
    k('s_add_u32 s26, s26, s27')
    k('s_and_b32 s27, s24, 1')
    k('s_lshl_b32 s27, s27, 3')
    k('s_lshr_b32 s28, s25, 2')
    k('s_add_u32 s27, s27, s28')
    k('v_and_b32 v1, 63, v0')
    k('v_lshrrev_b32 v2, 6, v0')
    k('v_lshlrev_b32 v3, 4, v1')
    k('v_readfirstlane_b32 s28, v2')
    k('s_lshl_b32 s29, s28, 10')
    k(f's_add_u32 s30, s29, {LM}')
    k('s_mov_b32 m0, s30')
    k('s_nop 0')
    k('buffer_load_dwordx4 v3, s[16:19], s29 offen lds')
    k('s_lshl_b32 s31, s27, 6')
    for t3 in range(3):
        k(f'v_add_u32 v8, {t3*64}, v1')
        div12(k, 8, 9, 10, 11)
        k('v_mul_u32_u24 v11, 3072, v9')
        k('v_lshrrev_b32 v12, 2, v10')
        k('v_lshl_add_u32 v11, v12, 10, v11')
        k('v_and_b32 v12, 3, v10')
        k('v_lshl_add_u32 v11, v12, 4, v11')
        k(f'v_add_u32 {v(4+t3)}, s31, v11')
    k('s_lshl_b32 s32, s26, 2')
    k('s_add_u32 s32, s32, s28')
    k('s_lshl_b32 s33, s32, 15')
    k('s_mul_i32 s34, s28, 49152')
    k('s_mul_i32 s35, s28, 3072')
    X0 = 16
    for c in range(8):
        for i in range(4):
            k(f'buffer_load_dwordx4 {v(X0+16*c+4*i,4)}, v3, s[12:15], s33 offen offset:{i*1024}')
        k('s_add_u32 s33, s33, 4096')
        for t3 in range(3):
            k(f's_add_u32 m0, s35, {t3*1024}')
            k('s_nop 0')
            k(f'buffer_load_dwordx4 {v(4+t3)}, s[8:11], s34 offen lds')
        k(f's_add_u32 s34, s34, {64*3072}')
        k(f's_add_u32 s35, s35, {64*192}')
    k('v_lshrrev_b32 v8, 5, v1')
    k('v_bfe_u32 v9, v1, 4, 1')
    k('v_bfe_u32 v10, v1, 2, 2')
    k('v_and_b32 v11, 3, v1')
    k('v_lshl_add_u32 v12, v8, 3, v10')
    k('v_mul_u32_u24 v12, 192, v12')
    k('v_lshl_add_u32 v12, v9, 5, v12')
    k('v_lshl_add_u32 v12, v11, 3, v12')
    k('v_add_u32 v13, 49152, v12')
    k('v_lshlrev_b32 v14, 5, v8')
    k(f'v_add_u32 v14, {LM}, v14')
    ACC = 144; WB = [192, 204]; MB = [216, 232]; T0, T1 = 248, 249
    for i in range(48):
        k(f'v_mov_b32 {v(ACC+i)}, 0')
    def mod_reads(ks):
        m = MB[ks % 2]
        k(f'ds_read_b128 {v(m,4)}, v14 offset:{2048+ks*64}')
        k(f'ds_read_b128 {v(m+4,4)}, v14 offset:{2048+ks*64+16}')
        k(f'ds_read_b128 {v(m+8,4)}, v14 offset:{ks*64}')
        k(f'ds_read_b128 {v(m+12,4)}, v14 offset:{ks*64+16}')
    for ks in range(32):
        if ks % 4 == 0:
            c = ks // 4
            k(f's_waitcnt vmcnt({49-7*c})')
            k('s_barrier')
            if ks == 0:
                mod_reads(0)
        w = WB[ks % 2]
        base = 'v12' if ks < 16 else 'v13'
        o = (ks % 16) * 3072
        for T in range(3):
            for u in range(2):
                k(f'ds_read_b64_tr_b16 {v(w+4*T+2*u,2)}, {base} offset:{o+u*768+T*64}')
        if ks < 31:
            mod_reads(ks + 1)
            k('s_waitcnt lgkmcnt(10)')
        else:
            k('s_waitcnt lgkmcnt(6)')
        m = MB[ks % 2]
        for j in range(4):
            xr = X0 + 4 * ks + j
            k(f'v_lshlrev_b32 {v(T0)}, 16, {v(xr)}')
            k(f'v_and_b32 {v(T1)}, 0xffff0000, {v(xr)}')
            k(f'v_fma_f32 {v(T0)}, {v(T0)}, {v(m+2*j)}, {v(m+8+2*j)}')
            k(f'v_fma_f32 {v(T1)}, {v(T1)}, {v(m+2*j+1)}, {v(m+8+2*j+1)}')
            k(f'v_cvt_pk_bf16_f32 {v(xr)}, {v(T0)}, {v(T1)}')
        k(f's_waitcnt lgkmcnt({4 if ks < 31 else 0})')
        k('s_nop 1')
        xs = v(X0 + 4 * ks, 4)
        k(f'v_mfma_f32_32x32x16_bf16 {v(ACC,16)}, {v(w,4)}, {xs}, {v(ACC,16)}')
        k(f'v_mfma_f32_32x32x16_bf16 {v(ACC+16,16)}, {v(w+4,4)}, {xs}, {v(ACC+16,16)}')
        k(f'v_mfma_f32_32x32x16_bf16 {v(ACC+32,16)}, {xs}, {v(w+8,4)}, {v(ACC+32,16)}')
    k('s_lshl_b32 s36, s27, 17')
    k('s_lshl_b32 s37, s32, 10')
    k('s_add_u32 s36, s36, s37')
    k('s_add_u32 s37, s36, 65536')
    k('s_add_u32 s38, s36, 0x200000')
    k('s_add_u32 s39, s37, 0x200000')
    k('v_lshlrev_b32 v15, 16, v9')
    k('v_lshl_add_u32 v15, v8, 8, v15')
    k('v_and_b32 v11, 15, v1')
    k('v_lshl_add_u32 v15, v11, 4, v15')
    k('s_add_u32 s40, s36, 0x400000')
    k('s_nop 4')
    for r in range(16):
        k(f'v_mul_f32 {v(ACC+r)}, {0.25*LOG2E}, {v(ACC+r)}')
    for r in range(8):
        k(f'v_cvt_pk_bf16_f32 {v(16+r)}, {v(ACC+2*r)}, {v(ACC+2*r+1)}')
    k('buffer_store_dwordx4 v[16:19], v3, s[20:23], s36 offen')
    k('buffer_store_dwordx4 v[20:23], v3, s[20:23], s37 offen')
    for r in range(8):
        k(f'v_cvt_pk_bf16_f32 {v(24+r)}, {v(ACC+16+2*r)}, {v(ACC+16+2*r+1)}')
    k('buffer_store_dwordx4 v[24:27], v3, s[20:23], s38 offen')
    k('buffer_store_dwordx4 v[28:31], v3, s[20:23], s39 offen')
    for r in range(8):
        k(f'v_cvt_pk_bf16_f32 {v(32+r)}, {v(ACC+32+2*r)}, {v(ACC+32+2*r+1)}')
    k('buffer_store_dwordx4 v[32:35], v15, s[20:23], s40 offen')
    k('buffer_store_dwordx4 v[36:39], v15, s[20:23], s40 offen offset:512')
    k.label('qkv_end')
    k('s_endpgm')
    return k
```

```python
from fw import *
from layout import *

def gen_k3():
    LK = 0; LV = 65536; LO = 131072
    k = Kern('attn_kernel', 256, 512, 131072 + 6144, 128)
    k('s_cmp_ge_u32 s2, 256')
    k('s_cbranch_scc1 attn_end')
    srds(k, [(8, 'ws', OFF_Q, 3 * 0x200000), (12, 'ws', OFF_O, 0x200000)])
    k('s_and_b32 s24, s2, 7')
    k('s_lshl_b32 s24, s24, 2')
    k('s_lshr_b32 s25, s2, 6')
    k('s_add_u32 s24, s24, s25')
    k('s_lshr_b32 s25, s2, 3')
    k('s_and_b32 s25, s25, 7')
    k('v_and_b32 v1, 63, v0')
    k('v_lshrrev_b32 v2, 6, v0')
    k('v_lshlrev_b32 v3, 4, v1')
    k('v_readfirstlane_b32 s26, v2')
    k('s_lshl_b32 s27, s25, 3')
    k('s_add_u32 s27, s27, s26')
    k('s_lshl_b32 s28, s24, 16')
    k('s_lshl_b32 s29, s27, 10')
    k('s_add_u32 s29, s29, s28')
    Q = 4; C = 8; S = [24, 40]; P = 56; O = 64; KB = [80, 84]; VB = [88, 96]
    AK, AV, SV, M, T = 104, 105, 106, 107, 108
    k(f'buffer_load_dwordx4 {v(Q,4)}, v3, s[8:11], s29 offen')
    k('s_lshl_b32 s30, s26, 10')
    k('s_add_u32 s31, s28, s30')
    k('s_add_u32 s31, s31, 0x200000')
    k('s_add_u32 s32, s31, 0x200000')
    def dma(which, p8):
        lds = (LK if which == 'K' else LV) + p8 * 8192
        sb = 's31' if which == 'K' else 's32'
        k(f's_add_u32 m0, s30, {lds}')
        k(f's_add_u32 s33, {sb}, {p8*8192}')
        k(f'buffer_load_dwordx4 v3, s[8:11], s33 offen lds')
    for p8 in range(2):
        dma('K', p8); dma('V', p8)
    for p8 in range(2, 8):
        dma('K', p8); dma('V', p8)
    k('v_mov_b32 v110, 0x3f803f80')
    k('v_mov_b32 v111, 0x3f803f80')
    k('v_mov_b32 v112, 0x3f803f80')
    k('v_mov_b32 v113, 0x3f803f80')
    k('v_lshlrev_b32 v109, 4, v0')
    k('v_cmp_gt_u32 vcc, 384, v0')
    k('s_and_saveexec_b64 s[34:35], vcc')
    k(f'ds_write_b128 v109, v[110:113] offset:{LO - 65536 - 65536 + 65536}') if False else None
    k(f'v_add_u32 v109, {LO}, v109')
    k('ds_write_b128 v109, v[110:113]')
    k('s_mov_b64 exec, s[34:35]')
    k('v_lshrrev_b32 v109, 5, v1')
    k('v_and_b32 v110, 15, v1')
    k('v_lshlrev_b32 v110, 4, v110')
    k(f'v_lshl_add_u32 v111, v109, 8, v110')
    k(f'v_add_u32 v111, {LV}, v111')
    k(f'v_add_u32 v112, {LO}, v110')
    k('v_and_b32 v113, 16, v1')
    k('v_cmp_eq_u32 vcc, 0, v113')
    k('v_mov_b32 v113, 4096')
    k('s_nop 1')
    k(f'v_cndmask_b32 v114, v112, v111, vcc')
    k(f'v_cndmask_b32 {v(SV)}, 0, v113, vcc')
    k('s_mov_b32 s36, 0')
    k('s_mov_b32 s37, 1')
    k('s_waitcnt vmcnt(12) lgkmcnt(0)')
    k('s_barrier')
    k.label('attn_retry')
    k(f'v_mov_b32 {v(M)}, 0xff800000')
    k(f'v_mov_b32 {v(AK)}, v3')
    k('s_mov_b32 s38, 0')
    k.label('attn_maxloop')
    k(f'ds_read_b128 {v(KB[0],4)}, {v(AK)}')
    k(f'v_add_u32 {v(AK)}, 1024, {v(AK)}')
    k('s_waitcnt lgkmcnt(0)')
    k(f'v_mfma_f32_32x32x16_bf16 {v(S[0],16)}, {v(KB[0],4)}, {v(Q,4)}, 0')
    k('s_add_u32 s38, s38, 1')
    k('s_nop 11')
    for i in range(8):
        k(f'v_max3_f32 {v(M)}, {v(S[0]+2*i)}, {v(S[0]+2*i+1)}, {v(M)}')
    k('s_cmp_lt_u32 s38, s37')
    k('s_cbranch_scc1 attn_maxloop')
    k(f'v_mov_b32 {v(T)}, {v(M)}')
    k('s_nop 1')
    k(f'v_permlane32_swap_b32 {v(M)}, {v(T)}')
    k(f'v_max_f32 {v(M)}, {v(M)}, {v(T)}')
    for i in range(16):
        k(f'v_sub_f32 {v(C+i)}, 0, {v(M)}')
    for i in range(16):
        k(f'v_mov_b32 {v(O+i)}, 0')
    k(f'v_mov_b32 {v(AK)}, v3')
    k(f'v_mov_b32 {v(AV)}, v114')
    k(f'ds_read_b128 {v(KB[0],4)}, {v(AK)}')
    k(f'ds_read_b128 {v(KB[1],4)}, {v(AK)} offset:1024')
    k(f'ds_read_b128 {v(VB[0],4)}, {v(AV)}')
    k(f'ds_read_b128 {v(VB[0]+4,4)}, {v(AV)} offset:512')
    k('s_waitcnt lgkmcnt(3)')
    k(f'v_mfma_f32_32x32x16_bf16 {v(S[0],16)}, {v(KB[0],4)}, {v(Q,4)}, {v(C,16)}')
    k('s_mov_b32 s38, 0')
    k('s_nop 7')
    k.label('attn_loop')
    k('s_cmp_eq_u32 s38, 3')
    k('s_cbranch_scc0 attn_nobar')
    k('s_cmp_eq_u32 s36, 0')
    k('s_cbranch_scc0 attn_nobar')
    k('s_waitcnt vmcnt(0)')
    k('s_barrier')
    k.label('attn_nobar')
    for t in range(4):
        cur = S[t % 2]; nxt = S[(t + 1) % 2]
        k('s_waitcnt lgkmcnt(2)')
        k(f'v_mfma_f32_32x32x16_bf16 {v(nxt,16)}, {v(KB[(t+1)%2],4)}, {v(Q,4)}, {v(C,16)}')
        k(f'ds_read_b128 {v(KB[t%2],4)}, {v(AK)} offset:{(t+2)*1024}')
        k(f'ds_read_b128 {v(VB[(t+1)%2],4)}, {v(AV)} offset:{(t+1)*1024}')
        k(f'ds_read_b128 {v(VB[(t+1)%2]+4,4)}, {v(AV)} offset:{(t+1)*1024+512}')
        for i in range(8):
            k(f'v_exp_f32 {v(cur+2*i)}, {v(cur+2*i)}')
            k(f'v_exp_f32 {v(cur+2*i+1)}, {v(cur+2*i+1)}')
            if i >= 1:
                k(f'v_cvt_pk_bf16_f32 {v(P+i-1)}, {v(cur+2*i-2)}, {v(cur+2*i-1)}')
        k('s_nop 0')
        k(f'v_cvt_pk_bf16_f32 {v(P+7)}, {v(cur+14)}, {v(cur+15)}')
        k('s_waitcnt lgkmcnt(3)')
        k('s_nop 0')
        k(f'v_mfma_f32_32x32x16_bf16 {v(O,16)}, {v(VB[t%2],4)}, {v(P,4)}, {v(O,16)}')
        k(f'v_mfma_f32_32x32x16_bf16 {v(O,16)}, {v(VB[t%2]+4,4)}, {v(P+4,4)}, {v(O,16)}')
    k(f'v_add_u32 {v(AK)}, 4096, {v(AK)}')
    k(f'v_add_u32 {v(AV)}, {v(SV)}, {v(AV)}')
    k('s_add_u32 s38, s38, 1')
    k('s_cmp_lt_u32 s38, 16')
    k('s_cbranch_scc1 attn_loop')
    k('s_waitcnt lgkmcnt(0)')
    k('s_nop 11')
    k(f'v_mov_b32 {v(T)}, 0x5d800000')
    k(f'v_cmp_nle_f32 vcc, {v(O+8)}, {v(T)}')
    k('s_cmp_eq_u64 vcc, 0')
    k('s_cbranch_scc1 attn_fin')
    k('s_cmp_eq_u32 s36, 0')
    k('s_cbranch_scc0 attn_fin')
    k('s_mov_b32 s36, 1')
    k('s_mov_b32 s37, 64')
    k('s_branch attn_retry')
    k.label('attn_fin')
    k(f'v_rcp_f32 {v(T)}, {v(O+8)}')
    k('s_lshl_b32 s29, s27, 15')
    k('s_lshl_b32 s30, s24, 10')
    k('s_add_u32 s29, s29, s30')
    for i in range(8):
        k(f'v_mul_f32 {v(O+i)}, {v(O+i)}, {v(T)}')
    for i in range(4):
        k(f'v_cvt_pk_bf16_f32 {v(P+i)}, {v(O+2*i)}, {v(O+2*i+1)}')
    k(f'buffer_store_dwordx4 {v(P,4)}, v3, s[12:15], s29 offen')
    k.label('attn_end')
    k('s_endpgm')
    return k
```

```python
from fw import *
from layout import *

def common_ids(k):
    k('s_and_b32 s24, s2, 7')
    k('s_lshl_b32 s24, s24, 2')
    k('s_lshr_b32 s25, s2, 3')
    k('s_and_b32 s26, s25, 3')
    k('s_add_u32 s24, s24, s26')
    k('s_lshr_b32 s25, s2, 5')
    k('v_and_b32 v1, 63, v0')
    k('v_lshrrev_b32 v2, 6, v0')
    k('v_lshlrev_b32 v3, 4, v1')
    k('v_readfirstlane_b32 s26, v2')

def reduce_tiles(k, ACC, TMP):
    for w in range(4):
        lab = k.newlabel('rw')
        k(f's_cmp_eq_u32 s26, {w}')
        k(f's_cbranch_scc0 {lab}')
        for d in range(4):
            if d == w:
                continue
            slot = (w - d - 1) & 3
            for q in range(4):
                k(f'ds_write_b128 v3, {v(ACC+16*d+4*q,4)} offset:{(d*3+slot)*4096+q*1024}')
        if w != 0:
            for r in range(16):
                k(f'v_mov_b32 {v(ACC+r)}, {v(ACC+16*w+r)}')
        k.label(lab)
    k('s_waitcnt lgkmcnt(0)')
    k('s_barrier')
    k('s_mul_i32 s27, s26, 12288')
    k('v_add_u32 v4, s27, v3')
    for sl in range(3):
        for q in range(4):
            k(f'ds_read_b128 {v(TMP+16*sl+4*q,4)}, v4 offset:{sl*4096+q*1024}')
    for sl in range(3):
        k(f's_waitcnt lgkmcnt({8-4*sl})')
        for r in range(16):
            k(f'v_add_f32 {v(ACC+r)}, {v(ACC+r)}, {v(TMP+16*sl+r)}')

def gen_k4():
    k = Kern('wo_kernel', 256, 256, 49152, 256)
    k('s_cmp_ge_u32 s2, 256')
    k('s_cbranch_scc1 wo_end')
    srds(k, [(8, 'ws', OFF_O, 0x200000), (12, 'ws', OFF_WOT, 512 * 1024), (16, 'ws', OFF_MOD, 3072 * 4),
             (20, 'x', 0, 0x200000), (40, 'ws', OFF_X1, 0x200000)])
    common_ids(k)
    k('s_lshl_b32 s28, s24, 16')
    k('s_lshl_b32 s29, s26, 13')
    k('s_add_u32 s28, s28, s29')
    k('s_add_u32 s30, s28, 32768')
    k('s_lshl_b32 s31, s25, 16')
    k('s_add_u32 s31, s31, s29')
    k('s_add_u32 s32, s31, 32768')
    F = 16; ACC = 144; TMP = 16
    sb = ['s28', 's30', 's31', 's32']
    for half in range(2):
        for i in range(4):
            ks = half * 4 + i
            for wh in range(4):
                srd = 's[8:11]' if wh < 2 else 's[12:15]'
                k(f'buffer_load_dwordx4 {v(F+16*ks+4*wh,4)}, v3, {srd}, {sb[wh]} offen offset:{i*1024}')
        if half == 0:
            for x_ in sb:
                k(f's_add_u32 {x_}, {x_}, 4096')
    k('s_lshr_b32 s33, s26, 1')
    k('s_and_b32 s34, s26, 1')
    k('s_lshl_b32 s35, s25, 1')
    k('s_add_u32 s35, s35, s33')
    k('s_lshl_b32 s36, s24, 1')
    k('s_add_u32 s36, s36, s34')
    k('v_lshrrev_b32 v5, 5, v1')
    k('v_lshlrev_b32 v6, 4, v5')
    k('s_lshl_b32 s37, s35, 7')
    k('s_add_u32 s37, s37, 4096')
    GA = 208; XR = 224
    for q in range(4):
        k(f'buffer_load_dwordx4 {v(GA+4*q,4)}, v6, s[16:19], s37 offen offset:{q*32}')
    k('v_and_b32 v7, 31, v1')
    k('v_lshlrev_b32 v7, 10, v7')
    k('v_lshl_add_u32 v7, v5, 3, v7')
    k('s_lshl_b32 s38, s36, 15')
    k('s_lshl_b32 s39, s35, 6')
    k('s_add_u32 s38, s38, s39')
    for q in range(4):
        k(f'buffer_load_dwordx2 {v(XR+2*q,2)}, v7, s[20:23], s38 offen offset:{q*16}')
    for ks in range(8):
        k(f's_waitcnt vmcnt({8+28-4*ks})')
        for nt in range(2):
            for mt in range(2):
                acc = v(ACC + 16 * (nt * 2 + mt), 16)
                c = acc if ks else '0'
                k(f'v_mfma_f32_32x32x16_bf16 {acc}, {v(F+16*ks+8+4*nt,4)}, {v(F+16*ks+4*mt,4)}, {c}')
    k('s_nop 11')
    reduce_tiles(k, ACC, TMP)
    k('s_waitcnt vmcnt(0)')
    for q in range(4):
        for j in range(2):
            xr = XR + 2 * q + j
            k(f'v_lshlrev_b32 v8, 16, {v(xr)}')
            k(f'v_and_b32 v9, 0xffff0000, {v(xr)}')
            r = 4 * q + 2 * j
            k(f'v_fma_f32 v8, {v(ACC+r)}, {v(GA+r)}, v8')
            k(f'v_fma_f32 v9, {v(ACC+r+1)}, {v(GA+r+1)}, v9')
            k(f'v_cvt_pk_bf16_f32 {v(232+2*q+j)}, v8, v9')
    k('s_lshl_b32 s38, s36, 15')
    k('s_lshl_b32 s39, s35, 11')
    k('s_add_u32 s38, s38, s39')
    k('buffer_store_dwordx4 v[232:235], v3, s[40:43], s38 offen')
    k('buffer_store_dwordx4 v[236:239], v3, s[40:43], s38 offen offset:1024')
    k.label('wo_end')
    k('s_endpgm')
    return k

def gen_k6():
    k = Kern('down_kernel', 256, 256, 49152, 256, 64)
    k('s_cmp_ge_u32 s2, 256')
    k('s_cbranch_scc1 down_end')
    srds(k, [(8, 'ws', OFF_H, 2048 * 1376 * 2), (12, 'ws', OFF_WDT, 1376 * 1024), (16, 'ws', OFF_MOD, 3072 * 4),
             (20, 'ws', OFF_X1, 0x200000), (40, 'out', 0, 0x200000)])
    common_ids(k)
    k('s_mul_i32 s29, s26, 22')
    k('s_cmp_eq_u32 s26, 3')
    k('s_cselect_b32 s29, 65, s29')
    k('s_lshl_b32 s29, s29, 10')
    k(f's_mul_i32 s28, s24, {2*86*1024}')
    k('s_add_u32 s28, s28, s29')
    k(f's_add_u32 s30, s28, {86*1024}')
    k(f's_mul_i32 s31, s25, {2*86*1024}')
    k('s_add_u32 s31, s31, s29')
    k(f's_add_u32 s32, s31, {86*1024}')
    F = 16; NB = 12; TMP = 16
    sb = ['s28', 's30', 's31', 's32']
    def loads(ks):
        if ks % 4 == 0 and ks:
            for x_ in sb:
                k(f's_add_u32 {x_}, {x_}, 4096')
        for wh in range(4):
            srd = 's[8:11]' if wh < 2 else 's[12:15]'
            k(f'buffer_load_dwordx4 {v(F+16*(ks%NB)+4*wh,4)}, v3, {srd}, {sb[wh]} offen offset:{(ks%4)*1024}')
    for ks in range(NB):
        loads(ks)
    NK = 22
    for ks in range(NK):
        issued = min(NK, NB + ks)
        if ks == NK - 1:
            k('s_cmp_ge_u32 s26, 2')
            k('s_cbranch_scc1 down_skip')
        k(f's_waitcnt vmcnt({4*(issued-ks-1)})')
        for nt in range(2):
            for mt in range(2):
                acc = a(16 * (nt * 2 + mt), 16)
                c = acc if ks else '0'
                b = F + 16 * (ks % NB)
                k(f'v_mfma_f32_32x32x16_bf16 {acc}, {v(b+8+4*nt,4)}, {v(b+4*mt,4)}, {c}')
        if ks + NB < NK:
            loads(ks + NB)
    k.label('down_skip')
    k('s_waitcnt vmcnt(0)')
    k('s_lshr_b32 s33, s26, 1')
    k('s_and_b32 s34, s26, 1')
    k('s_lshl_b32 s35, s25, 1')
    k('s_add_u32 s35, s35, s33')
    k('s_lshl_b32 s36, s24, 1')
    k('s_add_u32 s36, s36, s34')
    k('v_lshrrev_b32 v5, 5, v1')
    k('v_lshlrev_b32 v6, 4, v5')
    k('s_lshl_b32 s37, s35, 7')
    k(f's_add_u32 s37, s37, {2560*4}')
    GA = 208; XR = 224; ACC = 144
    for q in range(4):
        k(f'buffer_load_dwordx4 {v(GA+4*q,4)}, v6, s[16:19], s37 offen offset:{q*32}')
    k('s_lshl_b32 s38, s36, 15')
    k('s_lshl_b32 s39, s35, 11')
    k('s_add_u32 s38, s38, s39')
    k(f'buffer_load_dwordx4 {v(XR,4)}, v3, s[20:23], s38 offen')
    k(f'buffer_load_dwordx4 {v(XR+4,4)}, v3, s[20:23], s38 offen offset:1024')
    k('s_nop 7')
    for r in range(64):
        k(f'v_accvgpr_read_b32 {v(ACC+r)}, {a(r)}')
    k('s_nop 1')
    reduce_tiles(k, ACC, TMP)
    k('v_and_b32 v7, 31, v1')
    k('v_lshlrev_b32 v7, 10, v7')
    k('v_lshl_add_u32 v7, v5, 3, v7')
    k('s_lshl_b32 s38, s36, 15')
    k('s_lshl_b32 s39, s35, 6')
    k('s_add_u32 s38, s38, s39')
    k('s_waitcnt vmcnt(0)')
    for q in range(4):
        for j in range(2):
            xr = XR + 2 * q + j
            k(f'v_lshlrev_b32 v8, 16, {v(xr)}')
            k(f'v_and_b32 v9, 0xffff0000, {v(xr)}')
            r = 4 * q + 2 * j
            k(f'v_fma_f32 v8, {v(ACC+r)}, {v(GA+r)}, v8')
            k(f'v_fma_f32 v9, {v(ACC+r+1)}, {v(GA+r+1)}, v9')
            k(f'v_cvt_pk_bf16_f32 {v(232+2*q+j)}, v8, v9')
        k(f'buffer_store_dwordx2 {v(232+2*q,2)}, v7, s[40:43], s38 offen offset:{q*16}')
    k.label('down_end')
    k('s_endpgm')
    return k
```

```python
from fw import *
from layout import *
from k2 import div12
LOG2E = 1.4426950408889634

def gen_k5():
    SLOT = 24576; NS = 6; LM = SLOT * NS
    k = Kern('glu_kernel', 240, 256, LM + 4096, 256, 96)
    k('s_cmp_ge_u32 s2, 240')
    k('s_cbranch_scc1 glu_end')
    srds(k, [(8, 'wg', 0, 512 * 2752), (44, 'wu', 0, 512 * 2752), (12, 'ws', OFF_X1, 2048 * 1024),
             (16, 'ws', OFF_MOD + 1536 * 4, 4096), (20, 'ws', OFF_H, 2048 * 1376 * 2)])
    k('s_and_b32 s24, s2, 7')
    k('s_lshr_b32 s25, s2, 3')
    k('s_lshl_b32 s26, s24, 1')
    k('s_and_b32 s27, s25, 1')
    k('s_add_u32 s26, s26, s27')
    k('s_lshr_b32 s27, s25, 1')
    k('s_mul_i32 s27, s27, 3')
    k('s_min_u32 s27, s27, 40')
    k('v_and_b32 v1, 63, v0')
    k('v_lshrrev_b32 v2, 6, v0')
    k('v_lshlrev_b32 v3, 4, v1')
    k('v_readfirstlane_b32 s28, v2')
    k('s_lshl_b32 s32, s26, 2')
    k('s_add_u32 s32, s32, s28')
    k('s_lshl_b32 s33, s32, 15')
    X0 = 16
    for c in range(8):
        for i in range(4):
            k(f'buffer_load_dwordx4 {v(X0+16*c+4*i,4)}, v3, s[12:15], s33 offen offset:{i*1024}')
        k('s_add_u32 s33, s33, 4096')
    k('s_lshl_b32 s29, s28, 10')
    k(f's_add_u32 s30, s29, {LM}')
    k('s_mov_b32 m0, s30')
    k('s_nop 0')
    k('buffer_load_dwordx4 v3, s[16:19], s29 offen lds')
    k('s_lshl_b32 s31, s27, 6')
    for t3 in range(3):
        k(f'v_add_u32 v8, {t3*64}, v1')
        div12(k, 8, 9, 10, 11)
        k('v_mul_u32_u24 v11, 2752, v9')
        k('v_lshl_add_u32 v11, v10, 4, v11')
        k(f'v_add_u32 {v(4+t3)}, s31, v11')
    k(f's_mul_i32 s34, s28, {16*2752}')
    k('s_mul_i32 s35, s28, 3072')
    def wdma(c):
        sl = (c % NS) * SLOT
        for g in range(2):
            srd = 's[8:11]' if g == 0 else 's[44:47]'
            for t3 in range(3):
                k(f's_add_u32 m0, s35, {sl+g*12288+t3*1024}')
                k(f's_add_u32 s36, s34, {c*64*2752}')
                k(f'buffer_load_dwordx4 {v(4+t3)}, {srd}, s36 offen lds')
    for c in range(NS - 1):
        wdma(c)
    k('v_lshrrev_b32 v8, 5, v1')
    k('v_bfe_u32 v9, v1, 4, 1')
    k('v_bfe_u32 v10, v1, 2, 2')
    k('v_and_b32 v11, 3, v1')
    k('v_lshl_add_u32 v12, v8, 2, v10')
    k('v_mul_u32_u24 v12, 192, v12')
    k('v_lshl_add_u32 v12, v9, 5, v12')
    k('v_lshl_add_u32 v12, v11, 3, v12')
    k(f'v_add_u32 v13, {2*SLOT}, v12')
    k(f'v_add_u32 v14, {4*SLOT}, v12')
    k('v_lshlrev_b32 v15, 4, v8')
    k(f'v_add_u32 v15, {LM}, v15')
    WB = [144, 168]; MB = [192, 208]; T0, T1, R, MR = 224, 225, 226, 227
    S1 = 228; S2 = 232; ONE = 236
    k(f'v_mov_b32 {v(ONE)}, 0x3f803f80')
    for i in range(4):
        k(f'v_mov_b32 {v(S1+i)}, 0')
        k(f'v_mov_b32 {v(S2+i)}, 0')
    for c in range(8):
        k(f's_waitcnt vmcnt({59 if c == 0 else 65-4*c})')
        for i in range(16):
            xr = X0 + 16 * c + i
            k(f'v_dot2_f32_bf16 {v(S1+i%4)}, {v(xr)}, {v(ONE)}, {v(S1+i%4)}')
            k(f'v_dot2_f32_bf16 {v(S2+i%4)}, {v(xr)}, {v(xr)}, {v(S2+i%4)}')
        if c == 0:
            wdma(NS - 1)
    for b in (S1, S2):
        k(f'v_add_f32 {v(b)}, {v(b)}, {v(b+1)}')
        k(f'v_add_f32 {v(b+2)}, {v(b+2)}, {v(b+3)}')
    for b in (S1, S2):
        k(f'v_add_f32 {v(b)}, {v(b)}, {v(b+2)}')
    for b in (S1, S2):
        k(f'v_mov_b32 {v(b+1)}, {v(b)}')
    k('s_nop 1')
    for b in (S1, S2):
        k(f'v_permlane32_swap_b32 {v(b)}, {v(b+1)}')
    for b in (S1, S2):
        k(f'v_add_f32 {v(b)}, {v(b)}, {v(b+1)}')
    k(f'v_mul_f32 {v(S1)}, {1.0/512}, {v(S1)}')
    k(f'v_mul_f32 {v(S2)}, {1.0/512}, {v(S2)}')
    k(f'v_fma_f32 {v(S2)}, -{v(S1)}, {v(S1)}, {v(S2)}')
    k(f'v_max_f32 {v(S2)}, 0, {v(S2)}')
    k(f'v_add_f32 {v(S2)}, 0x3727c5ac, {v(S2)}')
    k(f'v_rsq_f32 {v(R)}, {v(S2)}')
    k('s_nop 0')
    k(f'v_mul_f32 {v(MR)}, {v(S1)}, {v(R)}')
    k(f'v_sub_f32 {v(MR)}, 0, {v(MR)}')
    def mod_reads(ks):
        m = MB[ks % 2]
        k(f'ds_read_b128 {v(m,4)}, v15 offset:{2048+ks*64}')
        k(f'ds_read_b128 {v(m+4,4)}, v15 offset:{2048+ks*64+32}')
        k(f'ds_read_b128 {v(m+8,4)}, v15 offset:{ks*64}')
        k(f'ds_read_b128 {v(m+12,4)}, v15 offset:{ks*64+32}')
    for ks in range(32):
        c = ks // 4
        if ks % 4 == 0:
            issued = min(8, NS + max(0, c - 1))
            k(f's_waitcnt vmcnt({6*(issued-c-1)})')
            k('s_barrier')
            if ks == 0:
                mod_reads(0)
            if 1 <= c <= 2:
                wdma(NS + c - 1)
        w = WB[ks % 2]
        sl = c % NS
        base = ['v12', 'v13', 'v14'][sl // 2]
        o = (sl % 2) * SLOT + (ks % 4) * 3072
        for g in range(2):
            for T in range(3):
                for u in range(2):
                    k(f'ds_read_b64_tr_b16 {v(w+12*g+4*T+2*u,2)}, {base} offset:{o+g*12288+u*1536+T*64}')
        k('s_waitcnt lgkmcnt(12)')
        m = MB[ks % 2]
        for j in range(4):
            xr = X0 + 4 * ks + j
            k(f'v_lshlrev_b32 {v(T0)}, 16, {v(xr)}')
            k(f'v_and_b32 {v(T1)}, 0xffff0000, {v(xr)}')
            k(f'v_fma_f32 {v(T0)}, {v(T0)}, {v(R)}, {v(MR)}')
            k(f'v_fma_f32 {v(T1)}, {v(T1)}, {v(R)}, {v(MR)}')
            k(f'v_fma_f32 {v(T0)}, {v(T0)}, {v(m+2*j)}, {v(m+8+2*j)}')
            k(f'v_fma_f32 {v(T1)}, {v(T1)}, {v(m+2*j+1)}, {v(m+8+2*j+1)}')
            k(f'v_cvt_pk_bf16_f32 {v(xr)}, {v(T0)}, {v(T1)}')
        if ks < 31:
            mod_reads(ks + 1)
        k(f's_waitcnt lgkmcnt({4 if ks < 31 else 0})')
        k('s_nop 1')
        xs = v(X0 + 4 * ks, 4)
        for g in range(2):
            for T in range(3):
                acc = a(48 * g + 16 * T, 16)
                cc = acc if ks else '0'
                k(f'v_mfma_f32_32x32x16_bf16 {acc}, {v(w+12*g+4*T,4)}, {xs}, {cc}')
    k(f's_mul_i32 s36, s32, {86*1024}')
    k('s_lshl_b32 s37, s27, 11')
    k('s_add_u32 s36, s36, s37')
    k('s_nop 7')
    k('s_nop 3')
    G = 16; U = 64
    for T in range(3):
        for r in range(16):
            k(f'v_accvgpr_read_b32 {v(G+16*T+r)}, {a(16*T+r)}')
        for r in range(16):
            k(f'v_accvgpr_read_b32 {v(U+16*T+r)}, {a(48+16*T+r)}')
        for r in range(16):
            k(f'v_mul_f32 {v(G+16*T+r)}, {-LOG2E}, {v(G+16*T+r)}')
        for r in range(16):
            k(f'v_exp_f32 {v(G+16*T+r)}, {v(G+16*T+r)}')
        for r in range(16):
            k(f'v_add_f32 {v(G+16*T+r)}, 1.0, {v(G+16*T+r)}')
        for r in range(16):
            k(f'v_rcp_f32 {v(G+16*T+r)}, {v(G+16*T+r)}')
        for r in range(16):
            k(f'v_mul_f32 {v(U+16*T+r)}, {v(U+16*T+r)}, {v(G+16*T+r)}')
        for r in range(8):
            k(f'v_cvt_pk_bf16_f32 {v(112+8*T+r)}, {v(U+16*T+2*r)}, {v(U+16*T+2*r+1)}')
        k(f'buffer_store_dwordx4 {v(112+8*T,4)}, v3, s[20:23], s36 offen')
        k(f'buffer_store_dwordx4 {v(116+8*T,4)}, v3, s[20:23], s36 offen offset:1024')
        k('s_add_u32 s36, s36, 2048')
    k.label('glu_end')
    k('s_endpgm')
    return k
```

```python
import sys
sys.path.insert(0, 'gen')
from fw import *
from k1 import gen_k1
kerns = [gen_k1()]
try:
    from k2 import gen_k2
    kerns.append(gen_k2())
    from k3 import gen_k3
    kerns.append(gen_k3())
    from k46 import gen_k4, gen_k6
    kerns.append(gen_k4())
    from k5 import gen_k5
    kerns.append(gen_k5())
    kerns.append(gen_k6())
except ImportError as e:
    print('partial', e)
out = sys.argv[1] if len(sys.argv) > 1 else 'adaLN_cond__mha_block__glu_gated_glu__prompt.s'
emit(kerns, out)
```

```python
import os
PROF = os.environ.get('PROF') == '1'
class Kern:
    def __init__(self, name, grid, block, lds, nvgpr, nagpr=0):
        self.name = name; self.grid = grid; self.block = block; self.lds = lds
        self.nvgpr = nvgpr; self.nagpr = nagpr
        self.L = []
        self.uid = 0
        self.nst = 0
        self.kidx = Kern.count; Kern.count += 1
    count = 0
    def stamp(self):
        if not PROF: return
        if self.nst == 0:
            self('s_memrealtime s[68:69]')
        assert self.nst < 14
        self(f's_memtime s[{72+2*self.nst}:{73+2*self.nst}]')
        self.nst += 1
    def prof_end(self, nwaves=4):
        if not PROF: return
        self.stamp()
        self('s_memrealtime s[70:71]')
        self('s_load_dwordx2 s[64:65], s[0:1], 88')
        self('s_mov_b32 s66, 0x1000000')
        self('s_mov_b32 s67, 0x00020000')
        self('s_waitcnt lgkmcnt(0)')
        self(f's_add_u32 s64, s64, {0x3000000 + self.kidx*0x80000}')
        self('s_addc_u32 s65, s65, 0')
        self('s_mov_b64 exec, 1')
        self('v_lshrrev_b32 v0, 6, v0')
        self('v_lshlrev_b32 v0, 6, v0')
        self('s_lshl_b32 s63, s2, 10')
        self('v_mov_b32 v4, s68')
        self('v_mov_b32 v5, s70')
        for i in range(14):
            self(f'v_mov_b32 v{6+i}, s{72+2*i}' if i < self.nst else f'v_mov_b32 v{6+i}, 0')
        for q in range(4):
            self(f'buffer_store_dwordx4 v[{4+4*q}:{7+4*q}], v0, s[64:67], s63 offen offset:{16*q}')
    def __call__(self, s):
        for line in s.strip().split('\n'):
            self.L.append('  ' + line.strip())
    def label(self, l):
        self.L.append(f'{l}:')
    def newlabel(self, base):
        self.uid += 1
        return f'{self.name}_{base}_{self.uid}'
    def text(self):
        hdr = [f'.globl {self.name}', '.p2align 8', f'.type {self.name},@function', f'{self.name}:']
        return '\n'.join(hdr + self.L) + '\n'
    def desc(self):
        acc = (self.nvgpr + 3) // 4 * 4
        nfv = acc + self.nagpr
        return f'''.p2align 6
.amdhsa_kernel {self.name}
  .amdhsa_next_free_vgpr {nfv}
  .amdhsa_next_free_sgpr 102
  .amdhsa_accum_offset {acc}
  .amdhsa_group_segment_fixed_size 0
  .amdhsa_kernarg_size 96
  .amdhsa_user_sgpr_count 2
  .amdhsa_user_sgpr_kernarg_segment_ptr 1
  .amdhsa_system_sgpr_workgroup_id_x 1
.end_amdhsa_kernel
'''
def v(i, n=1):
    return f'v{i}' if n == 1 else f'v[{i}:{i+n-1}]'
def a(i, n=1):
    return f'a{i}' if n == 1 else f'a[{i}:{i+n-1}]'
def s(i, n=1):
    return f's{i}' if n == 1 else f's[{i}:{i+n-1}]'

KA = dict(x=0, wqkv=8, wo=16, wg=32, wu=40, wd=48, c=56, wmod=64, out=72, dbg=80, ws=88)

def srds(k, specs):
    for (sr, nm, off, size) in specs:
        k(f's_load_dwordx2 {s(sr,2)}, s[0:1], {KA[nm]}')
    for (sr, nm, off, size) in specs:
        k(f's_mov_b32 {s(sr+2)}, {size}')
        k(f's_mov_b32 {s(sr+3)}, 0x00020000')
    k('s_waitcnt lgkmcnt(0)')
    if k.nst: k.stamp()
    for (sr, nm, off, size) in specs:
        if off:
            k(f's_add_u32 {s(sr)}, {s(sr)}, {off}')
            k(f's_addc_u32 {s(sr+1)}, {s(sr+1)}, 0')

HEADER = '''; Kernarg layout for this problem (96 bytes, ptrs only, base s[0:1]):
'''
def emit(kerns, path):
    out = HEADER
    for k in kerns:
        out += f'; @launch kernel={k.name} grid=({k.grid},1,1) block=({k.block},1,1) lds={k.lds}\n'
    out += '.amdgcn_target "amdgcn-amd-amdhsa--gfx950"\n.text\n'
    for k in kerns:
        out += k.text()
    out += '.section .rodata,"a"\n'
    for k in kerns:
        out += k.desc()
    open(path, 'w').write(out)

class Ctr:
    def __init__(self, k, name, mx):
        self.k = k; self.name = name; self.mx = mx; self.q = []
    def issue(self, tag):
        self.q.append(tag)
    def need(self, tag):
        idx = [i for i, t in enumerate(self.q) if t == tag]
        if not idx:
            return None
        return len(self.q) - 1 - idx[-1]
    def wait(self, *tags):
        ns = [self.need(t) for t in tags]
        ns = [n for n in ns if n is not None]
        if not ns:
            return
        n = min(min(ns), self.mx)
        self.q = self.q[len(self.q) - n:] if n else []
        self.k(f's_waitcnt {self.name}({n})')
    def waitall(self):
        self.q = []
        self.k(f's_waitcnt {self.name}(0)')
```

```python
from fw import *
from layout import *
LOG2E = 1.4426950408889634

def div12(k, q, row, c, tmp):
    k(f'v_mul_u32_u24 {v(row)}, 0xaaab, {v(q)}')
    k(f'v_lshrrev_b32 {v(row)}, 19, {v(row)}')
    k(f'v_mul_u32_u24 {v(tmp)}, 12, {v(row)}')
    k(f'v_sub_u32 {v(c)}, {v(q)}, {v(tmp)}')

def gen_k2():
    LW = 0; LM = 98304
    k = Kern('qkv_kernel', 256, 256, 98304 + 4096, 256)
    k('s_cmp_ge_u32 s2, 256')
    k('s_cbranch_scc1 qkv_end')
    k.stamp()
    srds(k, [(8, 'wqkv', 0, 512 * 3072), (12, 'ws', OFF_XN, 2048 * 1024), (16, 'ws', OFF_MOD, 4096),
             (20, 'ws', OFF_Q, 3 * 0x200000)])
    k('s_and_b32 s24, s2, 7')
    k('s_lshr_b32 s25, s2, 3')
    k('s_lshr_b32 s26, s24, 1')
    k('s_lshl_b32 s26, s26, 2')
    k('s_and_b32 s27, s25, 3')
    k('s_add_u32 s26, s26, s27')
    k('s_and_b32 s27, s24, 1')
    k('s_lshl_b32 s27, s27, 3')
    k('s_lshr_b32 s28, s25, 2')
    k('s_add_u32 s27, s27, s28')
    k('v_and_b32 v1, 63, v0')
    k('v_lshrrev_b32 v2, 6, v0')
    k('v_lshlrev_b32 v3, 4, v1')
    k('v_readfirstlane_b32 s28, v2')
    k('s_lshl_b32 s29, s28, 10')
    k(f's_add_u32 s30, s29, {LM}')
    k('s_mov_b32 m0, s30')
    k('s_nop 0')
    k('buffer_load_dwordx4 v3, s[16:19], s29 offen lds')
    k('s_lshl_b32 s31, s27, 6')
    for t3 in range(3):
        k(f'v_add_u32 v8, {t3*64}, v1')
        div12(k, 8, 9, 10, 11)
        k('v_mul_u32_u24 v11, 3072, v9')
        k('v_lshrrev_b32 v12, 2, v10')
        k('v_lshl_add_u32 v11, v12, 10, v11')
        k('v_and_b32 v12, 3, v10')
        k('v_lshl_add_u32 v11, v12, 4, v11')
        k(f'v_add_u32 {v(4+t3)}, s31, v11')
    k('s_lshl_b32 s32, s26, 2')
    k('s_add_u32 s32, s32, s28')
    k('s_lshl_b32 s33, s32, 15')
    k('s_mul_i32 s34, s28, 49152')
    k('s_mul_i32 s35, s28, 3072')
    X0 = 16
    for c in range(8):
        for i in range(4):
            k(f'buffer_load_dwordx4 {v(X0+16*c+4*i,4)}, v3, s[12:15], s33 offen offset:{i*1024}')
        k('s_add_u32 s33, s33, 4096')
        for t3 in range(3):
            k(f's_add_u32 m0, s35, {t3*1024}')
            k('s_nop 0')
            k(f'buffer_load_dwordx4 {v(4+t3)}, s[8:11], s34 offen lds')
        k(f's_add_u32 s34, s34, {64*3072}')
        k(f's_add_u32 s35, s35, {64*192}')
    k('v_lshrrev_b32 v8, 5, v1')
    k('v_bfe_u32 v9, v1, 4, 1')
    k('v_bfe_u32 v10, v1, 2, 2')
    k('v_and_b32 v11, 3, v1')
    k('v_lshl_add_u32 v12, v8, 3, v10')
    k('v_mul_u32_u24 v12, 192, v12')
    k('v_lshl_add_u32 v12, v9, 5, v12')
    k('v_lshl_add_u32 v12, v11, 3, v12')
    k('v_add_u32 v13, 49152, v12')
    k('v_lshlrev_b32 v14, 5, v8')
    k(f'v_add_u32 v14, {LM}, v14')
    ACC = 144; WB = [192, 204]; MB = [216, 232]; T0, T1 = 248, 249
    k.stamp()
    for i in range(48):
        k(f'v_mov_b32 {v(ACC+i)}, 0')
    def mod_reads(ks):
        m = MB[ks % 2]
        k(f'ds_read_b128 {v(m,4)}, v14 offset:{2048+ks*64}')
        k(f'ds_read_b128 {v(m+4,4)}, v14 offset:{2048+ks*64+16}')
        k(f'ds_read_b128 {v(m+8,4)}, v14 offset:{ks*64}')
        k(f'ds_read_b128 {v(m+12,4)}, v14 offset:{ks*64+16}')
    for ks in range(32):
        if ks % 4 == 0:
            c = ks // 4
            k(f's_waitcnt vmcnt({49-7*c})')
            k('s_barrier')
            k.stamp()
            if ks == 0:
                mod_reads(0)
        w = WB[ks % 2]
        base = 'v12' if ks < 16 else 'v13'
        o = (ks % 16) * 3072
        for T in range(3):
            for u in range(2):
                k(f'ds_read_b64_tr_b16 {v(w+4*T+2*u,2)}, {base} offset:{o+u*768+T*64}')
        if ks < 31:
            mod_reads(ks + 1)
            k('s_waitcnt lgkmcnt(10)')
        else:
            k('s_waitcnt lgkmcnt(6)')
        m = MB[ks % 2]
        for j in range(4):
            xr = X0 + 4 * ks + j
            k(f'v_lshlrev_b32 {v(T0)}, 16, {v(xr)}')
            k(f'v_and_b32 {v(T1)}, 0xffff0000, {v(xr)}')
            k(f'v_fma_f32 {v(T0)}, {v(T0)}, {v(m+2*j)}, {v(m+8+2*j)}')
            k(f'v_fma_f32 {v(T1)}, {v(T1)}, {v(m+2*j+1)}, {v(m+8+2*j+1)}')
            k(f'v_cvt_pk_bf16_f32 {v(xr)}, {v(T0)}, {v(T1)}')
        k(f's_waitcnt lgkmcnt({4 if ks < 31 else 0})')
        k('s_nop 1')
        xs = v(X0 + 4 * ks, 4)
        k(f'v_mfma_f32_32x32x16_bf16 {v(ACC,16)}, {v(w,4)}, {xs}, {v(ACC,16)}')
        k(f'v_mfma_f32_32x32x16_bf16 {v(ACC+16,16)}, {v(w+4,4)}, {xs}, {v(ACC+16,16)}')
        k(f'v_mfma_f32_32x32x16_bf16 {v(ACC+32,16)}, {xs}, {v(w+8,4)}, {v(ACC+32,16)}')
    k.stamp()
    k('s_lshl_b32 s36, s27, 17')
    k('s_lshl_b32 s37, s32, 10')
    k('s_add_u32 s36, s36, s37')
    k('s_add_u32 s37, s36, 65536')
    k('s_add_u32 s38, s36, 0x200000')
    k('s_add_u32 s39, s37, 0x200000')
    k('v_lshlrev_b32 v15, 16, v9')
    k('v_lshl_add_u32 v15, v8, 8, v15')
    k('v_and_b32 v11, 15, v1')
    k('v_lshl_add_u32 v15, v11, 4, v15')
    k('s_add_u32 s40, s36, 0x400000')
    k('s_nop 4')
    for r in range(16):
        k(f'v_mul_f32 {v(ACC+r)}, {0.25*LOG2E}, {v(ACC+r)}')
    for r in range(8):
        k(f'v_cvt_pk_bf16_f32 {v(16+r)}, {v(ACC+2*r)}, {v(ACC+2*r+1)}')
    k('buffer_store_dwordx4 v[16:19], v3, s[20:23], s36 offen')
    k('buffer_store_dwordx4 v[20:23], v3, s[20:23], s37 offen')
    for r in range(8):
        k(f'v_cvt_pk_bf16_f32 {v(24+r)}, {v(ACC+16+2*r)}, {v(ACC+16+2*r+1)}')
    k('buffer_store_dwordx4 v[24:27], v3, s[20:23], s38 offen')
    k('buffer_store_dwordx4 v[28:31], v3, s[20:23], s39 offen')
    for r in range(8):
        k(f'v_cvt_pk_bf16_f32 {v(32+r)}, {v(ACC+32+2*r)}, {v(ACC+32+2*r+1)}')
    k('buffer_store_dwordx4 v[32:35], v15, s[20:23], s40 offen')
    k('buffer_store_dwordx4 v[36:39], v15, s[20:23], s40 offen offset:512')
    k('s_waitcnt vmcnt(0)') if PROF else None
    k.prof_end()
    k.label('qkv_end')
    k('s_endpgm')
    return k
```

```python
from fw import *
from layout import *

def gen_k3():
    LK = 0; LV = 65536; LO = 131072
    LS = 131072 + 6144
    k = Kern('attn_kernel', 256, 512, LS + 4096, 232)
    k('s_cmp_ge_u32 s2, 256')
    k('s_cbranch_scc1 attn_end')
    k.stamp()
    srds(k, [(8, 'ws', OFF_Q, 3 * 0x200000), (12, 'ws', OFF_O, 0x200000), (16, 'wg', 0, 512 * 2752), (20, 'wu', 0, 512 * 2752),
             (40, 'ws', OFF_MOD, 3072 * 4), (44, 'ws', OFF_WOT, 0x1D8000), (48, 'ws', OFF_WP, 2 * 43 * 65536), (52, 'ws', OFF_TU, 2 * 43 * 512)])
    k('s_and_b32 s56, s2, 3')
    k('s_mul_i32 s56, s56, 12')
    k('s_lshr_b32 s57, s2, 4')
    k('s_add_u32 s56, s56, s57')
    k('s_cmp_ge_u32 s57, 12')
    k('s_cselect_b32 s56, 99, s56')
    k('s_bfe_u32 s57, s2, 0x10003')
    k('s_cmp_eq_u32 s57, 1')
    k('s_cselect_b32 s16, s20, s16')
    k('s_cselect_b32 s17, s21, s17')
    k('s_bfe_u32 s58, s2, 0x10002')
    k('s_and_b32 s24, s2, 7')
    k('s_lshl_b32 s24, s24, 2')
    k('s_lshr_b32 s25, s2, 6')
    k('s_add_u32 s24, s24, s25')
    k('s_lshr_b32 s25, s2, 3')
    k('s_and_b32 s25, s25, 7')
    k('v_and_b32 v1, 63, v0')
    k('v_lshrrev_b32 v2, 6, v0')
    k('v_lshlrev_b32 v3, 4, v1')
    k('v_readfirstlane_b32 s26, v2')
    k('s_lshl_b32 s27, s25, 3')
    k('s_add_u32 s27, s27, s26')
    k('s_lshl_b32 s28, s24, 16')
    k('s_lshl_b32 s29, s27, 10')
    k('s_add_u32 s29, s29, s28')
    Q = 4; C = 8; S = [24, 40]; P = 56; O = 64; KB = [80, 84]; VB = [88, 96]
    AK, AV, SV, M, T = 104, 105, 106, 107, 108
    k(f'buffer_load_dwordx4 {v(Q,4)}, v3, s[8:11], s29 offen')
    k('s_lshl_b32 s30, s26, 10')
    k('s_add_u32 s31, s28, s30')
    k('s_add_u32 s31, s31, 0x200000')
    k('s_add_u32 s32, s31, 0x200000')
    def dma(which, p8):
        lds = (LK if which == 'K' else LV) + p8 * 8192
        sb = 's31' if which == 'K' else 's32'
        k(f's_add_u32 m0, s30, {lds}')
        k(f's_add_u32 s33, {sb}, {p8*8192}')
        k(f'buffer_load_dwordx4 v3, s[8:11], s33 offen lds')
    for p8 in range(2):
        dma('K', p8); dma('V', p8)
    for p8 in range(2, 8):
        dma('K', p8); dma('V', p8)
    k('v_mov_b32 v110, 0x3f803f80')
    k('v_mov_b32 v111, 0x3f803f80')
    k('v_mov_b32 v112, 0x3f803f80')
    k('v_mov_b32 v113, 0x3f803f80')
    k('v_lshlrev_b32 v109, 4, v0')
    k('v_cmp_gt_u32 vcc, 384, v0')
    k('s_and_saveexec_b64 s[34:35], vcc')
    k(f'ds_write_b128 v109, v[110:113] offset:{LO - 65536 - 65536 + 65536}') if False else None
    k(f'v_add_u32 v109, {LO}, v109')
    k('ds_write_b128 v109, v[110:113]')
    k('s_mov_b64 exec, s[34:35]')
    k('v_lshrrev_b32 v109, 5, v1')
    k('v_and_b32 v110, 15, v1')
    k('v_lshlrev_b32 v110, 4, v110')
    k(f'v_lshl_add_u32 v111, v109, 8, v110')
    k(f'v_add_u32 v111, {LV}, v111')
    k(f'v_add_u32 v112, {LO}, v110')
    k('v_and_b32 v113, 16, v1')
    k('v_cmp_eq_u32 vcc, 0, v113')
    k('v_mov_b32 v113, 4096')
    k('s_nop 1')
    k(f'v_cndmask_b32 v114, v112, v111, vcc')
    k(f'v_cndmask_b32 {v(SV)}, 0, v113, vcc')
    k('s_mov_b32 s36, 0')
    k('s_mov_b32 s37, 1')
    k.stamp()
    k('s_waitcnt vmcnt(12) lgkmcnt(0)')
    k('s_barrier')
    k.stamp()
    k.label('attn_retry')
    k(f'v_mov_b32 {v(M)}, 0xff800000')
    k(f'v_mov_b32 {v(AK)}, v3')
    k('s_mov_b32 s38, 0')
    k.label('attn_maxloop')
    k(f'ds_read_b128 {v(KB[0],4)}, {v(AK)}')
    k(f'v_add_u32 {v(AK)}, 1024, {v(AK)}')
    k('s_waitcnt lgkmcnt(0)')
    k(f'v_mfma_f32_32x32x16_bf16 {v(S[0],16)}, {v(KB[0],4)}, {v(Q,4)}, 0')
    k('s_add_u32 s38, s38, 1')
    k('s_nop 11')
    for i in range(8):
        k(f'v_max3_f32 {v(M)}, {v(S[0]+2*i)}, {v(S[0]+2*i+1)}, {v(M)}')
    k('s_cmp_lt_u32 s38, s37')
    k('s_cbranch_scc1 attn_maxloop')
    k(f'v_mov_b32 {v(T)}, {v(M)}')
    k('s_nop 1')
    k(f'v_permlane32_swap_b32 {v(M)}, {v(T)}')
    k(f'v_max_f32 {v(M)}, {v(M)}, {v(T)}')
    for i in range(16):
        k(f'v_sub_f32 {v(C+i)}, 0, {v(M)}')
    for i in range(16):
        k(f'v_mov_b32 {v(O+i)}, 0')
    k(f'v_mov_b32 {v(AK)}, v3')
    k(f'v_mov_b32 {v(AV)}, v114')
    k(f'ds_read_b128 {v(KB[0],4)}, {v(AK)}')
    k(f'ds_read_b128 {v(KB[1],4)}, {v(AK)} offset:1024')
    k(f'ds_read_b128 {v(VB[0],4)}, {v(AV)}')
    k(f'ds_read_b128 {v(VB[0]+4,4)}, {v(AV)} offset:512')
    k('s_waitcnt lgkmcnt(3)')
    k(f'v_mfma_f32_32x32x16_bf16 {v(S[0],16)}, {v(KB[0],4)}, {v(Q,4)}, {v(C,16)}')
    k('s_mov_b32 s38, 0')
    k.stamp()
    k('s_nop 7')
    k.label('attn_loop')
    k('s_cmp_eq_u32 s38, 3')
    k('s_cbranch_scc0 attn_nobar')
    k('s_cmp_eq_u32 s36, 0')
    k('s_cbranch_scc0 attn_nobar')
    k('s_waitcnt vmcnt(0)')
    k('s_barrier')
    k('s_lshr_b32 s59, s2, 3')
    k('s_lshl_b32 s59, s59, 3')
    k('s_add_u32 s59, s59, s26')
    k('s_lshl_b32 s59, s59, 13')
    for i in range(8):
        k(f'buffer_load_dwordx4 v[228:231], v3, s[44:47], s59 offen offset:{(i%4)*1024}')
        if i == 3:
            k('s_add_u32 s59, s59, 4096')
    k('s_cmp_ge_u32 s56, 43')
    k('s_cbranch_scc1 attn_nobar')
    PW = 120; PC = 152; PS = 184
    k('v_lshrrev_b32 v116, 5, v1')
    k('v_and_b32 v117, 31, v1')
    k('v_mul_u32_u24 v118, 11008, v116')
    k('v_lshl_add_u32 v118, v117, 1, v118')
    k('s_lshl_b32 s59, s56, 6')
    k(f's_mul_i32 s60, s26, {64*2752}')
    k('s_add_u32 s59, s59, s60')
    k('v_lshlrev_b32 v119, 4, v116')
    k('s_lshl_b32 s60, s26, 8')
    for kk in range(4):
        for j in range(8):
            k(f's_add_u32 s61, s59, {(16*kk+8*(j//4)+j%4)*2752}')
            k(f'buffer_load_ushort {v(PW+8*kk+j)}, v118, s[16:19], s61 offen')
    for kk in range(4):
        for jq in range(2):
            k(f's_add_u32 s61, s60, {2048*4}')
            k(f'buffer_load_dwordx4 {v(PC+8*kk+4*jq,4)}, v119, s[40:43], s61 offen offset:{kk*64+jq*32}')
            k(f's_add_u32 s61, s60, {1536*4}')
            k(f'buffer_load_dwordx4 {v(PS+8*kk+4*jq,4)}, v119, s[40:43], s61 offen offset:{kk*64+jq*32}')
    k.label('attn_nobar')
    for t in range(4):
        cur = S[t % 2]; nxt = S[(t + 1) % 2]
        k('s_waitcnt lgkmcnt(2)')
        k(f'v_mfma_f32_32x32x16_bf16 {v(nxt,16)}, {v(KB[(t+1)%2],4)}, {v(Q,4)}, {v(C,16)}')
        k(f'ds_read_b128 {v(KB[t%2],4)}, {v(AK)} offset:{(t+2)*1024}')
        k(f'ds_read_b128 {v(VB[(t+1)%2],4)}, {v(AV)} offset:{(t+1)*1024}')
        k(f'ds_read_b128 {v(VB[(t+1)%2]+4,4)}, {v(AV)} offset:{(t+1)*1024+512}')
        for i in range(8):
            k(f'v_exp_f32 {v(cur+2*i)}, {v(cur+2*i)}')
            k(f'v_exp_f32 {v(cur+2*i+1)}, {v(cur+2*i+1)}')
            if i >= 1:
                k(f'v_cvt_pk_bf16_f32 {v(P+i-1)}, {v(cur+2*i-2)}, {v(cur+2*i-1)}')
        k('s_nop 0')
        k(f'v_cvt_pk_bf16_f32 {v(P+7)}, {v(cur+14)}, {v(cur+15)}')
        k('s_waitcnt lgkmcnt(3)')
        k('s_nop 0')
        k(f'v_mfma_f32_32x32x16_bf16 {v(O,16)}, {v(VB[t%2],4)}, {v(P,4)}, {v(O,16)}')
        k(f'v_mfma_f32_32x32x16_bf16 {v(O,16)}, {v(VB[t%2]+4,4)}, {v(P+4,4)}, {v(O,16)}')
    k(f'v_add_u32 {v(AK)}, 4096, {v(AK)}')
    k(f'v_add_u32 {v(AV)}, {v(SV)}, {v(AV)}')
    k('s_add_u32 s38, s38, 1')
    k('s_cmp_lt_u32 s38, 16')
    k('s_cbranch_scc1 attn_loop')
    k('s_waitcnt lgkmcnt(0)')
    k('s_nop 11')
    k.stamp()
    k(f'v_mov_b32 {v(T)}, 0x5d800000')
    k(f'v_cmp_nle_f32 vcc, {v(O+8)}, {v(T)}')
    k('s_cmp_eq_u64 vcc, 0')
    k('s_cbranch_scc1 attn_fin')
    k('s_cmp_eq_u32 s36, 0')
    k('s_cbranch_scc0 attn_fin')
    k('s_mov_b32 s36, 1')
    k('s_mov_b32 s37, 64')
    k('s_branch attn_retry')
    k.label('attn_fin')
    k(f'v_rcp_f32 {v(T)}, {v(O+8)}')
    k('s_lshl_b32 s29, s27, 15')
    k('s_lshl_b32 s30, s24, 10')
    k('s_add_u32 s29, s29, s30')
    for i in range(8):
        k(f'v_mul_f32 {v(O+i)}, {v(O+i)}, {v(T)}')
    for i in range(4):
        k(f'v_cvt_pk_bf16_f32 {v(P+i)}, {v(O+2*i)}, {v(O+2*i+1)}')
    k(f'buffer_store_dwordx4 {v(P,4)}, v3, s[12:15], s29 offen')
    k('s_cmp_ge_u32 s56, 43')
    k('s_cbranch_scc1 attn_done')
    k('s_waitcnt vmcnt(0)')
    TT = [4, 5, 6, 7]; UU = [8, 9]; ONE = 10; OUTR = 216
    k(f'v_mov_b32 {v(ONE)}, 0x3f803f80')
    for r in TT + UU:
        k(f'v_mov_b32 {v(r)}, 0')
    k('s_mul_i32 s59, s58, 43')
    k('s_add_u32 s59, s59, s56')
    k('s_lshl_b32 s60, s59, 1')
    k('s_add_u32 s60, s60, s57')
    k('s_lshl_b32 s61, s60, 15')
    k('s_lshl_b32 s62, s26, 12')
    k('s_add_u32 s61, s61, s62')
    for kk in range(4):
        for j in range(8):
            k(f'v_lshlrev_b32 {v(PW+8*kk+j)}, 16, {v(PW+8*kk+j)}')
        for j in range(8):
            k(f'v_mul_f32 {v(PC+8*kk+j)}, {v(PC+8*kk+j)}, {v(PW+8*kk+j)}')
        for j in range(8):
            k(f'v_fmac_f32 {v(TT[j%4])}, {v(PS+8*kk+j)}, {v(PW+8*kk+j)}')
        for j in range(4):
            k(f'v_cvt_pk_bf16_f32 {v(OUTR+4*kk+j)}, {v(PC+8*kk+2*j)}, {v(PC+8*kk+2*j+1)}')
        for j in range(4):
            k(f'v_dot2_f32_bf16 {v(UU[j%2])}, {v(OUTR+4*kk+j)}, {v(ONE)}, {v(UU[j%2])}')
        k(f'buffer_store_dwordx4 {v(OUTR+4*kk,4)}, v3, s[48:51], s61 offen offset:{kk*1024}')
    k('v_add_f32 v4, v4, v5')
    k('v_add_f32 v6, v6, v7')
    k('v_add_f32 v5, v8, v9')
    k('v_add_f32 v4, v4, v6')
    k('v_lshlrev_b32 v6, 3, v0')
    k(f'v_add_u32 v6, {LS}, v6')
    k('ds_write_b64 v6, v[4:5]')
    k('s_waitcnt lgkmcnt(0)')
    k('s_barrier')
    k('s_cmp_eq_u32 s26, 0')
    k('s_cbranch_scc0 attn_done')
    k('v_and_b32 v6, 31, v1')
    k('v_lshlrev_b32 v7, 3, v6')
    k(f'v_add_u32 v7, {LS}, v7')
    for i in range(16):
        k(f'ds_read_b64 {v(16+2*i,2)}, v7 offset:{i*256}')
    k('s_waitcnt lgkmcnt(0)')
    n = 16
    while n > 1:
        for i in range(n // 2):
            k(f'v_add_f32 {v(16+2*i)}, {v(16+2*i)}, {v(16+2*i+n)}')
            k(f'v_add_f32 {v(17+2*i)}, {v(17+2*i)}, {v(17+2*i+n)}')
        n //= 2
    k('s_cmp_eq_u32 s57, 0')
    k('s_cselect_b32 s62, 0xbfb8aa3b, 1.0')
    k('v_mul_f32 v16, s62, v16')
    k('v_lshlrev_b32 v6, 2, v6')
    k('s_lshl_b32 s61, s60, 8')
    k('buffer_store_dword v16, v6, s[52:55], s61 offen')
    k('buffer_store_dword v17, v6, s[52:55], s61 offen offset:128')
    k.label('attn_done')
    k('s_waitcnt vmcnt(0)') if PROF else None
    k.prof_end()
    k.label('attn_end')
    k('s_endpgm')
    return k
```

```python
from fw import *
from layout import *
ROT = os.environ.get('ROT', '0') == '1'

def common_ids(k):
    k('s_and_b32 s24, s2, 7')
    k('s_lshl_b32 s24, s24, 2')
    k('s_lshr_b32 s25, s2, 3')
    k('s_and_b32 s26, s25, 3')
    k('s_add_u32 s24, s24, s26')
    k('s_lshr_b32 s25, s2, 5')
    k('v_and_b32 v1, 63, v0')
    k('v_lshrrev_b32 v2, 6, v0')
    k('v_lshlrev_b32 v3, 4, v1')
    k('v_readfirstlane_b32 s26, v2')

def reduce_tiles(k, ACC, TMP):
    for w in range(4):
        lab = k.newlabel('rw')
        k(f's_cmp_eq_u32 s26, {w}')
        k(f's_cbranch_scc0 {lab}')
        for d in range(4):
            if d == w:
                continue
            slot = (w - d - 1) & 3
            for q in range(4):
                k(f'ds_write_b128 v3, {v(ACC+16*d+4*q,4)} offset:{(d*3+slot)*4096+q*1024}')
        if w != 0:
            for r in range(16):
                k(f'v_mov_b32 {v(ACC+r)}, {v(ACC+16*w+r)}')
        k.label(lab)
    k('s_waitcnt lgkmcnt(0)')
    k('s_barrier')
    k('s_mul_i32 s27, s26, 12288')
    k('v_add_u32 v4, s27, v3')
    for sl in range(3):
        for q in range(4):
            k(f'ds_read_b128 {v(TMP+16*sl+4*q,4)}, v4 offset:{sl*4096+q*1024}')
    for sl in range(3):
        k(f's_waitcnt lgkmcnt({8-4*sl})')
        for r in range(16):
            k(f'v_add_f32 {v(ACC+r)}, {v(ACC+r)}, {v(TMP+16*sl+r)}')

def gen_k4():
    k = Kern('wo_kernel', 256, 256, 49152, 256)
    k('s_cmp_ge_u32 s2, 256')
    k('s_cbranch_scc1 wo_end')
    k.stamp()
    srds(k, [(8, 'ws', OFF_O, 0x200000), (12, 'ws', OFF_WOT, 512 * 1024), (16, 'ws', OFF_MOD, 3072 * 4),
             (20, 'x', 0, 0x200000), (40, 'ws', OFF_X1, 0x200000), (44, 'ws', OFF_ST, 2048 * 128)])
    common_ids(k)
    k('s_lshl_b32 s28, s24, 16')
    k('s_lshl_b32 s29, s26, 13')
    k('s_add_u32 s28, s28, s29')
    k('s_add_u32 s30, s28, 32768')
    k('s_lshl_b32 s31, s25, 16')
    k('s_add_u32 s31, s31, s29')
    k('s_add_u32 s32, s31, 32768')
    F = 16; ACC = 144; TMP = 16
    sb = ['s28', 's30', 's31', 's32']
    for half in range(2):
        for i in range(4):
            ks = half * 4 + i
            for wh in range(4):
                srd = 's[8:11]' if wh < 2 else 's[12:15]'
                k(f'buffer_load_dwordx4 {v(F+16*ks+4*wh,4)}, v3, {srd}, {sb[wh]} offen offset:{i*1024}')
        if half == 0:
            for x_ in sb:
                k(f's_add_u32 {x_}, {x_}, 4096')
            k.stamp()
    k('s_lshr_b32 s33, s26, 1')
    k('s_and_b32 s34, s26, 1')
    k('s_lshl_b32 s35, s25, 1')
    k('s_add_u32 s35, s35, s33')
    k('s_lshl_b32 s36, s24, 1')
    k('s_add_u32 s36, s36, s34')
    k('v_lshrrev_b32 v5, 5, v1')
    k('v_lshlrev_b32 v6, 4, v5')
    k('s_lshl_b32 s37, s35, 7')
    k('s_add_u32 s37, s37, 4096')
    GA = 208; XR = 224
    for q in range(4):
        k(f'buffer_load_dwordx4 {v(GA+4*q,4)}, v6, s[16:19], s37 offen offset:{q*32}')
    k('v_and_b32 v7, 31, v1')
    k('v_lshlrev_b32 v7, 10, v7')
    k('v_lshl_add_u32 v7, v5, 3, v7')
    k('s_lshl_b32 s38, s36, 15')
    k('s_lshl_b32 s39, s35, 6')
    k('s_add_u32 s38, s38, s39')
    for q in range(4):
        k(f'buffer_load_dwordx2 {v(XR+2*q,2)}, v7, s[20:23], s38 offen offset:{q*16}')
    k.stamp()
    for ks in range(8):
        k(f's_waitcnt vmcnt({8+28-4*ks})')
        if ks in (0, 4, 7): k.stamp()
        for nt in range(2):
            for mt in range(2):
                acc = v(ACC + 16 * (nt * 2 + mt), 16)
                c = acc if ks else '0'
                k(f'v_mfma_f32_32x32x16_bf16 {acc}, {v(F+16*ks+8+4*nt,4)}, {v(F+16*ks+4*mt,4)}, {c}')
    k('s_nop 11')
    reduce_tiles(k, ACC, TMP)
    k.stamp()
    k('s_waitcnt vmcnt(0)')
    for q in range(4):
        for j in range(2):
            xr = XR + 2 * q + j
            k(f'v_lshlrev_b32 v8, 16, {v(xr)}')
            k(f'v_and_b32 v9, 0xffff0000, {v(xr)}')
            r = 4 * q + 2 * j
            k(f'v_fma_f32 {v(ACC+r)}, {v(ACC+r)}, {v(GA+r)}, v8')
            k(f'v_fma_f32 {v(ACC+r+1)}, {v(ACC+r+1)}, {v(GA+r+1)}, v9')
            k(f'v_cvt_pk_bf16_f32 {v(232+2*q+j)}, {v(ACC+r)}, {v(ACC+r+1)}')
    k('s_lshl_b32 s38, s36, 15')
    k('s_lshl_b32 s39, s35, 11')
    k('s_add_u32 s38, s38, s39')
    k('buffer_store_dwordx4 v[232:235], v3, s[40:43], s38 offen')
    k('buffer_store_dwordx4 v[236:239], v3, s[40:43], s38 offen offset:1024')
    k(f'v_add_f32 v8, {v(ACC)}, {v(ACC+1)}')
    k(f'v_mul_f32 v9, {v(ACC)}, {v(ACC)}')
    k(f'v_add_f32 v10, {v(ACC+2)}, {v(ACC+3)}')
    k(f'v_mul_f32 v11, {v(ACC+1)}, {v(ACC+1)}')
    for r in range(4, 16, 2):
        k(f'v_add_f32 v8, v8, {v(ACC+r)}')
        k(f'v_add_f32 v10, v10, {v(ACC+r+1)}')
    for r in range(2, 16, 2):
        k(f'v_fmac_f32 v9, {v(ACC+r)}, {v(ACC+r)}')
        k(f'v_fmac_f32 v11, {v(ACC+r+1)}, {v(ACC+r+1)}')
    k('v_add_f32 v8, v8, v10')
    k('v_add_f32 v9, v9, v11')
    k('v_mov_b32 v10, v8')
    k('v_mov_b32 v11, v9')
    k('v_and_b32 v12, 31, v1')
    k('v_lshlrev_b32 v12, 7, v12')
    k('v_permlane32_swap_b32 v8, v10')
    k('v_permlane32_swap_b32 v9, v11')
    k('s_lshl_b32 s38, s36, 12')
    k('s_lshl_b32 s39, s35, 3')
    k('s_add_u32 s38, s38, s39')
    k('v_add_f32 v8, v8, v10')
    k('v_add_f32 v9, v9, v11')
    k('buffer_store_dwordx2 v[8:9], v12, s[44:47], s38 offen')
    k('s_waitcnt vmcnt(0)') if PROF else None
    k.prof_end()
    k.label('wo_end')
    k('s_endpgm')
    return k

def gen_k6():
    k = Kern('down_kernel', 256, 256, 49152, 256, 64)
    k('s_cmp_ge_u32 s2, 256')
    k('s_cbranch_scc1 down_end')
    k.stamp()
    srds(k, [(8, 'ws', OFF_H, 2048 * 1376 * 2), (12, 'ws', OFF_WDT, 1376 * 1024), (16, 'ws', OFF_MOD, 3072 * 4),
             (20, 'ws', OFF_X1, 0x200000), (40, 'out', 0, 0x200000)])
    common_ids(k)
    k('s_mul_i32 s29, s26, 22')
    k('s_cmp_eq_u32 s26, 3')
    k('s_cselect_b32 s29, 65, s29')
    k('s_lshl_b32 s29, s29, 10')
    k(f's_mul_i32 s28, s24, {2*86*1024}')
    k('s_add_u32 s28, s28, s29')
    k(f's_add_u32 s30, s28, {86*1024}')
    k(f's_mul_i32 s31, s25, {2*86*1024}')
    k('s_add_u32 s31, s31, s29')
    k(f's_add_u32 s32, s31, {86*1024}')
    F = 16; NB = 12; TMP = 16
    sb = ['s28', 's30', 's31', 's32']
    k('s_lshr_b32 s44, s2, 3')
    k('s_and_b32 s44, s44, 3')
    k('s_lshl_b32 s44, s44, 1')
    k('s_add_u32 s44, s44, s25')
    k('s_and_b32 s44, s44, 7')
    k('s_mul_i32 s44, s44, 11')
    k('s_lshr_b32 s44, s44, 2')
    k('s_lshl_b32 s45, s44, 10') if ROT else k('s_mov_b32 s45, 0')
    k('s_cmp_ge_u32 s26, 2')
    k(f's_cselect_b32 s46, 21, 22')
    k('s_lshl_b32 s46, s46, 10')
    def loads(ks):
        for wh in range(4):
            srd = 's[8:11]' if wh < 2 else 's[12:15]'
            k(f's_add_u32 s47, {sb[wh]}, s45')
            k(f'buffer_load_dwordx4 {v(F+16*(ks%NB)+4*wh,4)}, v3, {srd}, s47 offen')
        k('s_add_u32 s45, s45, 1024')
        k('s_cmp_ge_u32 s45, s46')
        k('s_cselect_b32 s45, 0, s45')
    for ks in range(NB):
        loads(ks)
    NK = 22
    for ks in range(NK):
        issued = min(NK, NB + ks)
        if ks == NK - 1:
            k('s_cmp_ge_u32 s26, 2')
            k('s_cbranch_scc1 down_skip')
        k(f's_waitcnt vmcnt({4*(issued-ks-1)})')
        if ks in (0, 4, 8, 12, 16, 20): k.stamp()
        for nt in range(2):
            for mt in range(2):
                acc = a(16 * (nt * 2 + mt), 16)
                c = acc if ks else '0'
                b = F + 16 * (ks % NB)
                k(f'v_mfma_f32_32x32x16_bf16 {acc}, {v(b+8+4*nt,4)}, {v(b+4*mt,4)}, {c}')
        if ks + NB < NK:
            loads(ks + NB)
    k.label('down_skip')
    k('s_waitcnt vmcnt(0)')
    k.stamp()
    k('s_lshr_b32 s33, s26, 1')
    k('s_and_b32 s34, s26, 1')
    k('s_lshl_b32 s35, s25, 1')
    k('s_add_u32 s35, s35, s33')
    k('s_lshl_b32 s36, s24, 1')
    k('s_add_u32 s36, s36, s34')
    k('v_lshrrev_b32 v5, 5, v1')
    k('v_lshlrev_b32 v6, 4, v5')
    k('s_lshl_b32 s37, s35, 7')
    k(f's_add_u32 s37, s37, {2560*4}')
    GA = 208; XR = 224; ACC = 144
    for q in range(4):
        k(f'buffer_load_dwordx4 {v(GA+4*q,4)}, v6, s[16:19], s37 offen offset:{q*32}')
    k('s_lshl_b32 s38, s36, 15')
    k('s_lshl_b32 s39, s35, 11')
    k('s_add_u32 s38, s38, s39')
    k(f'buffer_load_dwordx4 {v(XR,4)}, v3, s[20:23], s38 offen')
    k(f'buffer_load_dwordx4 {v(XR+4,4)}, v3, s[20:23], s38 offen offset:1024')
    k('s_nop 7')
    for r in range(64):
        k(f'v_accvgpr_read_b32 {v(ACC+r)}, {a(r)}')
    k('s_nop 1')
    reduce_tiles(k, ACC, TMP)
    k.stamp()
    k('v_and_b32 v7, 31, v1')
    k('v_lshlrev_b32 v7, 10, v7')
    k('v_lshl_add_u32 v7, v5, 3, v7')
    k('s_lshl_b32 s38, s36, 15')
    k('s_lshl_b32 s39, s35, 6')
    k('s_add_u32 s38, s38, s39')
    k('s_waitcnt vmcnt(0)')
    for q in range(4):
        for j in range(2):
            xr = XR + 2 * q + j
            k(f'v_lshlrev_b32 v8, 16, {v(xr)}')
            k(f'v_and_b32 v9, 0xffff0000, {v(xr)}')
            r = 4 * q + 2 * j
            k(f'v_fma_f32 v8, {v(ACC+r)}, {v(GA+r)}, v8')
            k(f'v_fma_f32 v9, {v(ACC+r+1)}, {v(GA+r+1)}, v9')
            k(f'v_cvt_pk_bf16_f32 {v(232+2*q+j)}, v8, v9')
        k(f'buffer_store_dwordx2 {v(232+2*q,2)}, v7, s[40:43], s38 offen offset:{q*16}')
    k('s_waitcnt vmcnt(0)') if PROF else None
    k.prof_end()
    k.label('down_end')
    k('s_endpgm')
    return k
```

```python
from fw import *
from layout import *
LOG2E = 1.4426950408889634

def gen_k5():
    SLOT = 16384; NS = 8; LT = SLOT * NS
    k = Kern('glu_kernel', 256, 256, LT + 2048, 160, 128)
    k('s_cmp_ge_u32 s2, 256')
    k('s_cbranch_scc1 glu_end')
    k.stamp()
    k('s_and_b32 s24, s2, 7')
    k('s_lshr_b32 s25, s2, 3')
    k('s_lshr_b32 s29, s24, 2')
    k('s_lshl_b32 s26, s29, 3')
    k('s_and_b32 s27, s25, 7')
    k('s_add_u32 s26, s26, s27')
    k('s_and_b32 s27, s24, 3')
    k('s_lshl_b32 s27, s27, 2')
    k('s_lshr_b32 s28, s25, 3')
    k('s_add_u32 s27, s27, s28')
    k('s_cmp_ge_u32 s27, 15')
    k('s_cbranch_scc1 glu_end')
    srds(k, [(8, 'ws', OFF_WP, 2 * 43 * 65536), (12, 'ws', OFF_X1, 2048 * 1024),
             (16, 'ws', OFF_TU, 2 * 43 * 512), (20, 'ws', OFF_H, 2048 * 1376 * 2), (44, 'ws', OFF_ST, 2048 * 128)])
    k('s_mul_i32 s27, s27, 3')
    k('s_min_u32 s27, s27, 40')
    k('v_and_b32 v1, 63, v0')
    k('v_lshrrev_b32 v2, 6, v0')
    k('v_lshlrev_b32 v3, 4, v1')
    k('v_readfirstlane_b32 s28, v2')
    k('s_mul_i32 s30, s29, 43')
    k('s_add_u32 s30, s30, s27')
    k('s_lshl_b32 s34, s30, 16')
    k('s_lshl_b32 s32, s26, 2')
    k('s_add_u32 s32, s32, s28')
    k('s_lshl_b32 s33, s32, 15')
    k('s_lshl_b32 s35, s28, 11')
    k('s_add_u32 s34, s34, s35')
    vm = Ctr(k, 'vmcnt', 63); lg = Ctr(k, 'lgkmcnt', 15)
    def wdma(c):
        T, kg = c // 4, c % 4
        sl = (c % NS) * SLOT
        for g in range(2):
            for hh in range(2):
                k(f's_add_u32 m0, s35, {sl+g*8192+hh*1024}')
                k(f's_add_u32 s36, s34, {T*65536+g*32768+kg*8192+hh*1024}')
                k(f'buffer_load_dwordx4 v3, s[8:11], s36 offen lds')
                vm.issue(('w', c))
    for c in range(4):
        wdma(c)
        for i in range(8):
            k(f'buffer_load_dwordx4 {a(32*c+4*i,4)}, v3, s[12:15], s33 offen offset:{(i%4)*1024}')
            vm.issue(('x', 8 * c + i))
            if i % 4 == 3:
                k('s_add_u32 s33, s33, 4096')
    for c in range(4, 7):
        wdma(c)
    k.stamp()
    ACC = [16, 48]
    WB = 80
    E = 112
    PK = 128
    ST = 136
    NMU, RL, R, AT = 4, 5, 6, 7
    k('v_lshrrev_b32 v8, 5, v1')
    k('v_and_b32 v9, 31, v1')
    k('v_lshlrev_b32 v9, 7, v9')
    k('v_lshl_add_u32 v9, v8, 6, v9')
    k('v_lshlrev_b32 v10, 4, v8')
    k(f'v_add_u32 {v(AT)}, {LT}, v10')
    k('v_add_u32 v11, 65536, v3')
    k('s_lshl_b32 s37, s32, 12')
    k('s_lshl_b32 s38, s30, 9')
    k(f's_mul_i32 s39, s32, {86*1024}')
    k('s_lshl_b32 s40, s27, 11')
    k('s_add_u32 s39, s39, s40')
    def late_loads():
        for i in range(4):
            k(f'buffer_load_dwordx4 {v(ST+4*i,4)}, v9, s[44:47], s37 offen offset:{16*i}')
            vm.issue('st')
        k('s_and_b32 s41, s28, 1')
        k('s_lshl_b32 s41, s41, 10')
        k(f's_add_u32 m0, s41, {LT}')
        k('s_add_u32 s41, s41, s38')
        k('buffer_load_dwordx4 v3, s[16:19], s41 offen lds')
        vm.issue('tu')
    def wread(step):
        T, ks = step // 32, step % 32
        c = step // 8
        sl = c % NS
        base = 'v3' if sl < 4 else 'v11'
        o = (sl % 4) * SLOT + (ks % 8) * 1024
        b = WB + 8 * (step % 4)
        k(f'ds_read_b128 {v(b,4)}, {base} offset:{o}')
        lg.issue(('w', step))
        k(f'ds_read_b128 {v(b+4,4)}, {base} offset:{o+8192}')
        lg.issue(('w', step))
    def chunk_sync(c):
        vm.wait(('w', c))
        k('s_barrier')
        if c + 6 <= 11 and c >= 1:
            wdma(c + 6)
        if c == 1:
            late_loads()
    def stats_ops():
        ops = []
        A = lambda s_: ops.append(('i', s_))
        ops.append(('vmall',))
        for i in range(1, 8):
            A(f'v_add_f32 {v(ST)}, {v(ST)}, {v(ST+2*i)}')
            A(f'v_add_f32 {v(ST+1)}, {v(ST+1)}, {v(ST+2*i+1)}')
        A(f'v_mov_b32 {v(ST+2)}, {v(ST)}')
        A(f'v_mov_b32 {v(ST+3)}, {v(ST+1)}')
        A('s_nop 1')
        A(f'v_permlane32_swap_b32 {v(ST)}, {v(ST+2)}')
        A(f'v_permlane32_swap_b32 {v(ST+1)}, {v(ST+3)}')
        A(f'v_add_f32 {v(ST)}, {v(ST)}, {v(ST+2)}')
        A(f'v_add_f32 {v(ST+1)}, {v(ST+1)}, {v(ST+3)}')
        A(f'v_mul_f32 {v(NMU)}, {-1.0/512}, {v(ST)}')
        A(f'v_mul_f32 {v(ST+1)}, {1.0/512}, {v(ST+1)}')
        A(f'v_fma_f32 {v(ST+1)}, -{v(NMU)}, {v(NMU)}, {v(ST+1)}')
        A(f'v_max_f32 {v(ST+1)}, 0, {v(ST+1)}')
        A(f'v_add_f32 {v(ST+1)}, 0x3727c5ac, {v(ST+1)}')
        A(f'v_rsq_f32 {v(R)}, {v(ST+1)}')
        A('s_nop 0')
        A(f'v_mul_f32 {v(RL)}, {-LOG2E}, {v(R)}')
        return ops
    def epi_ops(T):
        ops = []
        A = lambda s_: ops.append(('i', s_))
        G = ACC[T % 2]; U = G + 16
        for q in range(4):
            for vec in range(4):
                ops.append(('ds', f'ds_read_b128 {v(E+4*vec,4)}, {v(AT)} offset:{T*512+vec*128+q*32}', ('e', T, q)))
            ops.append(('lgw', ('e', T, q)))
            for i in range(4):
                A(f'v_fma_f32 {v(G+4*q+i)}, {v(NMU)}, {v(E+4+i)}, {v(G+4*q+i)}')
            for i in range(4):
                A(f'v_fma_f32 {v(G+4*q+i)}, {v(RL)}, {v(G+4*q+i)}, {v(E+i)}')
            for i in range(4):
                A(f'v_exp_f32 {v(G+4*q+i)}, {v(G+4*q+i)}')
            for i in range(4):
                A(f'v_fma_f32 {v(U+4*q+i)}, {v(NMU)}, {v(E+12+i)}, {v(U+4*q+i)}')
            for i in range(4):
                A(f'v_add_f32 {v(G+4*q+i)}, 1.0, {v(G+4*q+i)}')
            for i in range(4):
                A(f'v_rcp_f32 {v(G+4*q+i)}, {v(G+4*q+i)}')
            for i in range(4):
                A(f'v_fma_f32 {v(U+4*q+i)}, {v(R)}, {v(U+4*q+i)}, {v(E+8+i)}')
            for i in range(4):
                A(f'v_mul_f32 {v(U+4*q+i)}, {v(U+4*q+i)}, {v(G+4*q+i)}')
            for i in range(2):
                A(f'v_cvt_pk_bf16_f32 {v(PK+2*q+i)}, {v(U+4*q+2*i)}, {v(U+4*q+2*i+1)}')
            if q % 2 == 1:
                A(f'buffer_store_dwordx4 {v(PK+2*q-2,4)}, v3, s[20:23], s39 offen offset:{(T%2)*2048+(q//2)*1024}')
        if T == 1:
            A('s_add_u32 s39, s39, 4096')
        return ops
    def run(op):
        if op[0] == 'i':
            k(op[1])
        elif op[0] == 'ds':
            k(op[1]); lg.issue(op[2])
        elif op[0] == 'lgw':
            lg.wait(op[1])
        elif op[0] == 'vmall':
            vm.wait('st', 'tu')
    PD = 3
    chunk_sync(0)
    k.stamp()
    for s_ in range(PD):
        wread(s_)
    pend = []
    for step in range(96):
        T, ks = step // 32, step % 32
        if ks == 0 and T > 0:
            assert not pend
            pend = [('i', 's_nop 0')] * 2 + epi_ops(T - 1)
            k.stamp()
        if step == 20:
            pend = stats_ops()
        nx = step + PD
        if nx < 96:
            if nx % 8 == 0:
                chunk_sync(nx // 8)
            wread(nx)
        if T == 0:
            vm.wait(('x', ks))
        lg.wait(('w', step))
        b = WB + 8 * (step % 4)
        for g in range(2):
            acc = v(ACC[T % 2] + 16 * g, 16)
            cc = acc if ks else '0'
            k(f'v_mfma_f32_32x32x16_bf16 {acc}, {v(b+4*g,4)}, {a(4*ks,4)}, {cc}')
            n = 3
            while n and pend:
                run(pend.pop(0)); n -= 1
    assert not pend
    k.stamp()
    k('s_nop 11')
    for op in epi_ops(2):
        run(op)
    k('s_waitcnt vmcnt(0)') if PROF else None
    k.prof_end()
    k.label('glu_end')
    k('s_endpgm')
    return k
```

```python
OFF_MOD = 0x0
OFF_MOD16 = 0x4000
OFF_XN = 0x10000
OFF_Q = 0x300000
OFF_K = 0x500000
OFF_V = 0x700000
OFF_O = 0x900000
OFF_X1 = 0xB00000
OFF_H = 0xD00000
OFF_WOT = 0x1300000
OFF_WDT = 0x1380000
OFF_WP = 0x1600000
OFF_TU = 0x1C00000
OFF_ST = 0x1C40000
OFF_WQ = 0x1D00000
```

```python
from fw import *
from layout import *
LOG2E = 1.4426950408889634

def reduce4(k, R, T, op='v_add_f32'):
    for rot in (8, 4, 2, 1):
        for i in range(4):
            k(f'{op}_dpp {v(R[i])}, {v(R[i])}, {v(R[i])} row_ror:{rot} row_mask:0xf bank_mask:0xf')
    for sw in ('v_permlane16_swap_b32', 'v_permlane32_swap_b32'):
        for i in range(4):
            k(f'v_mov_b32 {v(T[i])}, {v(R[i])}')
        for i in range(4):
            k(f'{sw} {v(R[i])}, {v(T[i])}')
        for i in range(4):
            k(f'{op} {v(R[i])}, {v(R[i])}, {v(T[i])}')

def gen_k1():
    NG, NL, NQ, NR = 48, 128, 96, 118
    k = Kern('prep_kernel', NG + NL + NQ + NR, 256, 8192, 112)
    k(f's_cmp_ge_u32 s2, {NG+NL+NQ+NR}')
    k('s_cbranch_scc1 prep_end')
    k.stamp()
    k(f's_cmp_ge_u32 s2, {NG+NL+NQ}')
    k('s_cbranch_scc1 prep_relayout')
    k(f's_cmp_ge_u32 s2, {NG+NL}')
    k('s_cbranch_scc1 prep_wq')
    k(f's_cmp_ge_u32 s2, {NG}')
    k('s_cbranch_scc1 prep_ln')
    srds(k, [(8, 'c', 0, 1024), (12, 'wmod', 0, 512 * 6144), (16, 'ws', OFF_MOD, OFF_MOD16 + 3072 * 2)])
    k('v_and_b32 v1, 7, v0')
    k('v_lshrrev_b32 v2, 3, v0')
    k('v_lshlrev_b32 v3, 5, v2')
    k('buffer_load_dwordx4 v[8:11], v3, s[8:11], 0 offen')
    k('buffer_load_dwordx4 v[12:15], v3, s[8:11], 0 offen offset:16')
    k('v_mul_u32_u24 v4, 0x18000, v2')
    k('v_lshl_add_u32 v4, v1, 4, v4')
    k('s_lshl_b32 s20, s2, 7')
    for p in range(16):
        k(f'buffer_load_dwordx4 {v(32+4*p,4)}, v4, s[12:15], s20 offen')
        k('s_add_u32 s20, s20, 6144')
    k('s_waitcnt vmcnt(16)')
    k.stamp()
    for p in range(16):
        src = 8 + p // 2
        d = 16 + p
        if p % 2 == 0:
            k(f'v_lshlrev_b32 {v(d)}, 16, {v(src)}')
        else:
            k(f'v_and_b32 {v(d)}, 0xffff0000, {v(src)}')
    for p in range(16):
        k(f'v_mul_f32 {v(96+p)}, {-LOG2E}, {v(16+p)}')
    for p in range(16):
        k(f'v_exp_f32 {v(96+p)}, {v(96+p)}')
    for p in range(16):
        k(f'v_add_f32 {v(96+p)}, 1.0, {v(96+p)}')
    for p in range(16):
        k(f'v_rcp_f32 {v(96+p)}, {v(96+p)}')
    for p in range(16):
        k(f'v_mul_f32 {v(16+p)}, {v(16+p)}, {v(96+p)}')
    for p in range(16):
        k(f'v_cvt_pk_bf16_f32 {v(16+p)}, {v(16+p)}, {v(16+p)}')
    for p in range(16):
        k(f'v_lshlrev_b32 {v(16+p)}, 16, {v(16+p)}')
    for i in range(8):
        k(f'v_mov_b32 {v(96+i)}, 0')
    for p in range(16):
        k(f's_waitcnt vmcnt({15-p})')
        for i in range(4):
            w = 32 + 4 * p + i
            k(f'v_lshlrev_b32 v104, 16, {v(w)}')
            k(f'v_and_b32 v105, 0xffff0000, {v(w)}')
            k(f'v_fmac_f32 {v(96+2*i)}, v104, {v(16+p)}')
            k(f'v_fmac_f32 {v(97+2*i)}, v105, {v(16+p)}')
    k.stamp()
    k('v_lshlrev_b32 v5, 5, v0')
    k('ds_write_b128 v5, v[96:99]')
    k('ds_write_b128 v5, v[100:103] offset:16')
    k('s_waitcnt lgkmcnt(0)')
    k('s_barrier')
    k('v_cmp_gt_u32 vcc, 64, v0')
    k('s_and_saveexec_b64 s[22:23], vcc')
    k('s_cbranch_execz prep_gend')
    k('v_lshlrev_b32 v5, 2, v0')
    for r in range(32):
        k(f'ds_read_b32 {v(32+r)}, v5 offset:{r*256}')
    k('s_waitcnt lgkmcnt(0)')
    n = 32
    while n > 1:
        for i in range(n // 2):
            k(f'v_add_f32 {v(32+i)}, {v(32+i)}, {v(32+i+n//2)}')
        n //= 2
    k('v_cvt_pk_bf16_f32 v32, v32, v32')
    k('v_lshlrev_b32 v32, 16, v32')
    k('v_add_f32 v33, 1.0, v32')
    k('v_cvt_pk_bf16_f32 v33, v33, v33')
    k('v_lshlrev_b32 v33, 16, v33')
    k('s_lshr_b32 s21, s2, 3')
    k('s_cmp_eq_u32 s21, 1')
    k('s_cselect_b32 s24, 1, 0')
    k('s_cmp_eq_u32 s21, 4')
    k('s_cselect_b32 s24, 1, s24')
    k('s_cmp_eq_u32 s24, 1')
    k('s_cbranch_scc0 prep_g1')
    k('v_mov_b32 v32, v33')
    k.label('prep_g1')
    k('s_lshl_b32 s20, s2, 8')
    k('v_cvt_f16_f32 v33, v32')
    k('v_lshlrev_b32 v6, 1, v0')
    k('s_lshl_b32 s21, s2, 7')
    k(f's_add_u32 s21, s21, {OFF_MOD16}')
    k('buffer_store_dword v32, v5, s[16:19], s20 offen')
    k('buffer_store_short v33, v6, s[16:19], s21 offen')
    k.label('prep_gend')
    k('s_waitcnt vmcnt(0)') if PROF else None
    k.prof_end(); k.nst = min(k.nst, 1)
    k('s_endpgm')
    k.label('prep_ln')
    srds(k, [(8, 'x', 0, 2048 * 1024), (16, 'ws', OFF_XN, 2048 * 1024)])
    k('v_and_b32 v1, 63, v0')
    k('v_lshrrev_b32 v2, 6, v0')
    k('s_nop 0')
    k('v_readfirstlane_b32 s20, v2')
    k(f's_sub_u32 s21, s2, {NG}')
    k('s_lshr_b32 s21, s21, 3')
    k('s_lshl_b32 s21, s21, 4')
    k('s_and_b32 s22, s2, 7')
    k('s_lshl_b32 s22, s22, 8')
    k('s_add_u32 s21, s21, s22')
    k('s_lshl_b32 s20, s20, 2')
    k('s_add_u32 s21, s21, s20')
    k('s_lshl_b32 s22, s21, 10')
    k('v_lshlrev_b32 v3, 4, v1')
    for i in range(4):
        k(f'buffer_load_dwordx4 {v(8+4*i,4)}, v3, s[8:11], s22 offen offset:{i*1024}')
    k('v_lshrrev_b32 v4, 1, v1')
    k('v_lshlrev_b32 v4, 10, v4')
    k('v_and_b32 v5, 1, v1')
    k('v_lshl_or_b32 v4, v5, 9, v4')
    k('s_lshr_b32 s23, s21, 5')
    k('s_lshl_b32 s23, s23, 15')
    k('s_and_b32 s24, s21, 31')
    k('s_lshl_b32 s24, s24, 4')
    k('s_add_u32 s23, s23, s24')
    R = [56, 57, 58, 59]; T = [60, 61, 62, 63]
    for i in range(4):
        k(f's_waitcnt vmcnt({3-i})')
        for j in range(4):
            k(f'v_lshlrev_b32 {v(24+8*i+2*j)}, 16, {v(8+4*i+j)}')
            k(f'v_and_b32 {v(25+8*i+2*j)}, 0xffff0000, {v(8+4*i+j)}')
        b = 24 + 8 * i
        k(f'v_add_f32 {v(R[i])}, {v(b)}, {v(b+1)}')
        k(f'v_add_f32 {v(T[i])}, {v(b+2)}, {v(b+3)}')
        k(f'v_add_f32 v64, {v(b+4)}, {v(b+5)}')
        k(f'v_add_f32 v65, {v(b+6)}, {v(b+7)}')
        k(f'v_add_f32 {v(R[i])}, {v(R[i])}, {v(T[i])}')
        k(f'v_add_f32 v64, v64, v65')
        k(f'v_add_f32 {v(R[i])}, {v(R[i])}, v64')
    k.stamp()
    k('s_nop 1')
    reduce4(k, R, T)
    k.stamp()
    for i in range(4):
        k(f'v_mul_f32 {v(R[i])}, {1.0/512}, {v(R[i])}')
    for i in range(4):
        b = 24 + 8 * i
        for j in range(8):
            k(f'v_sub_f32 {v(b+j)}, {v(b+j)}, {v(R[i])}')
    for i in range(4):
        b = 24 + 8 * i
        k(f'v_mul_f32 {v(R[i])}, {v(b)}, {v(b)}')
        k(f'v_mul_f32 {v(T[i])}, {v(b+1)}, {v(b+1)}')
        for j in range(2, 8, 2):
            k(f'v_fmac_f32 {v(R[i])}, {v(b+j)}, {v(b+j)}')
            k(f'v_fmac_f32 {v(T[i])}, {v(b+j+1)}, {v(b+j+1)}')
        k(f'v_add_f32 {v(R[i])}, {v(R[i])}, {v(T[i])}')
    k('s_nop 1')
    reduce4(k, R, T)
    k('v_mov_b32 v64, 0x3727c5ac')
    for i in range(4):
        k(f'v_fmac_f32 v64, {1.0/512}, {v(R[i])}') if False else None
        k(f'v_fma_f32 {v(R[i])}, {v(R[i])}, {v(66)}, v64') if False else None
    k(f'v_mov_b32 v65, {1.0/512}')
    for i in range(4):
        k(f'v_fma_f32 {v(R[i])}, {v(R[i])}, v65, v64')
    for i in range(4):
        k(f'v_rsq_f32 {v(R[i])}, {v(R[i])}')
    k('s_nop 0')
    for i in range(4):
        b = 24 + 8 * i
        for j in range(8):
            k(f'v_mul_f32 {v(b+j)}, {v(b+j)}, {v(R[i])}')
        for j in range(4):
            k(f'v_cvt_pk_f16_f32 {v(8+4*i+j)}, {v(b+2*j)}, {v(b+2*j+1)}')
        k(f'buffer_store_dwordx4 {v(8+4*i,4)}, v4, s[16:19], s23 offen offset:{i*16}')
    k('s_waitcnt vmcnt(0)') if PROF else None
    k.prof_end(); k.nst = min(k.nst, 1)
    k('s_endpgm')
    k.label('prep_wq')
    srds(k, [(8, 'wqkv', 0, 512 * 3072), (16, 'ws', OFF_WQ, 48 * 32768)])
    k(f's_sub_u32 s21, s2, {NG+NL}')
    k('s_lshr_b32 s21, s21, 3')
    k('s_lshl_b32 s21, s21, 2')
    k('s_bfe_u32 s22, s2, 0x20001')
    k('s_add_u32 s21, s21, s22')
    k('s_lshr_b32 s22, s21, 4')
    k('s_and_b32 s21, s21, 15')
    k('s_and_b32 s23, s2, 1')
    k('s_lshl_b32 s22, s22, 1')
    k('s_add_u32 s22, s22, s23')
    k('v_and_b32 v1, 63, v0')
    k('v_lshrrev_b32 v2, 6, v0')
    k('v_lshrrev_b32 v3, 5, v1')
    k('v_and_b32 v4, 31, v1')
    k('v_mul_u32_u24 v5, 24576, v3')
    k('v_lshl_add_u32 v5, v2, 7, v5')
    k('v_lshl_add_u32 v5, v4, 1, v5')
    k('v_readfirstlane_b32 s20, v2')
    k(f's_mul_i32 s24, s21, {32*3072}')
    k('s_lshl_b32 s25, s22, 9')
    k('s_add_u32 s24, s24, s25')
    for kk in range(2):
        for j in range(8):
            k(f's_add_u32 s25, s24, {(16*kk+j)*3072}')
            for t in range(2):
                k(f'buffer_load_ushort {v(32+16*kk+8*t+j)}, v5, s[8:11], s25 offen offset:{t*64}')
    k('s_lshl_b32 s26, s22, 3')
    k('s_lshl_b32 s20, s20, 1')
    k('s_add_u32 s26, s26, s20')
    k('s_lshl_b32 s26, s26, 15')
    k('s_lshl_b32 s27, s21, 11')
    k('s_add_u32 s26, s26, s27')
    k('s_add_u32 s27, s26, 32768')
    k('v_lshlrev_b32 v6, 4, v1')
    for kk in range(2):
        k(f's_waitcnt vmcnt({16-16*kk})') if kk == 0 else k('s_waitcnt vmcnt(2)')
        k.stamp()
        for i in range(16):
            k(f'v_lshlrev_b32 {v(32+16*kk+i)}, 16, {v(32+16*kk+i)}')
        for t in range(2):
            for j in range(4):
                k(f'v_cvt_pk_f16_f32 {v(8+8*kk+4*t+j)}, {v(32+16*kk+8*t+2*j)}, {v(32+16*kk+8*t+2*j+1)}')
            k(f'buffer_store_dwordx4 {v(8+8*kk+4*t,4)}, v6, s[16:19], {"s26" if t == 0 else "s27"} offen offset:{kk*1024}')
    k('s_waitcnt vmcnt(0)') if PROF else None
    k.prof_end(); k.nst = min(k.nst, 1)
    k('s_endpgm')
    k.label('prep_relayout')
    k(f's_sub_u32 s21, s2, {NG+NL+NQ}')
    k('s_cmp_ge_u32 s21, 32')
    k('s_cbranch_scc1 prep_rl_wd')
    srds(k, [(8, 'wo', 0, 512 * 1024), (16, 'ws', OFF_WOT, 512 * 1024)])
    k.nst = min(k.nst, 1)
    k('s_mov_b32 s25, 32')
    k('s_branch prep_rl_go')
    k.label('prep_rl_wd')
    srds(k, [(8, 'wd', 0, 1376 * 1024), (16, 'ws', OFF_WDT, 1376 * 1024)])
    k('s_mov_b32 s25, 86')
    k('s_sub_u32 s21, s21, 32')
    k.label('prep_rl_go')
    k('v_and_b32 v1, 63, v0')
    k('v_lshrrev_b32 v2, 6, v0')
    k('v_lshrrev_b32 v3, 5, v1')
    k('v_and_b32 v4, 31, v1')
    k('v_lshlrev_b32 v5, 12, v3')
    k('v_lshl_add_u32 v5, v2, 8, v5')
    k('v_lshl_add_u32 v5, v4, 1, v5')
    k('s_lshl_b32 s22, s21, 14')
    k('s_add_u32 s23, s22, 8192')
    for i in range(4):
        for j in range(8):
            so = 's22' if j < 4 else 's23'
            k(f'buffer_load_ushort {v(32+8*i+j)}, v5, s[8:11], {so} offen offset:{(j%4)*1024+i*64}')
    k('v_readfirstlane_b32 s20, v2')
    k('s_lshl_b32 s20, s20, 2')
    k('s_mul_i32 s20, s20, s25')
    k('s_add_u32 s20, s20, s21')
    k('s_lshl_b32 s20, s20, 10')
    k('s_lshl_b32 s26, s25, 10')
    k('v_lshlrev_b32 v6, 4, v1')
    for i in range(4):
        k(f's_waitcnt vmcnt({24-8*i})')
        if i in (0, 3): k.stamp()
        for j in range(4):
            k(f'v_lshl_or_b32 {v(8+4*i+j)}, {v(32+8*i+2*j+1)}, 16, {v(32+8*i+2*j)}')
        k(f'buffer_store_dwordx4 {v(8+4*i,4)}, v6, s[16:19], s20 offen')
        k('s_add_u32 s20, s20, s26')
    k('s_waitcnt vmcnt(0)') if PROF else None
    k.prof_end()
    k.label('prep_end')
    k('s_endpgm')
    return k
```

```python
from fw import *
from layout import *
LOG2E = 1.4426950408889634

def gen_k2():
    LM = 98304
    k = Kern('qkv_kernel', 256, 256, 98304 + 2048, 256)
    k('s_cmp_ge_u32 s2, 256')
    k('s_cbranch_scc1 qkv_end')
    k.stamp()
    srds(k, [(8, 'ws', OFF_WQ, 48 * 32768), (12, 'ws', OFF_XN, 2048 * 1024), (16, 'ws', OFF_MOD16, 2048),
             (20, 'ws', OFF_Q, 3 * 0x200000)])
    k('s_and_b32 s24, s2, 7')
    k('s_lshr_b32 s25, s2, 3')
    k('s_lshr_b32 s26, s24, 1')
    k('s_lshl_b32 s26, s26, 2')
    k('s_and_b32 s27, s25, 3')
    k('s_add_u32 s26, s26, s27')
    k('s_and_b32 s27, s24, 1')
    k('s_lshl_b32 s27, s27, 3')
    k('s_lshr_b32 s28, s25, 2')
    k('s_add_u32 s27, s27, s28')
    k('v_and_b32 v1, 63, v0')
    k('v_lshrrev_b32 v2, 6, v0')
    k('v_lshlrev_b32 v3, 4, v1')
    k('v_readfirstlane_b32 s28, v2')
    vm = Ctr(k, 'vmcnt', 63); lg = Ctr(k, 'lgkmcnt', 15)
    k('s_and_b32 s29, s28, 1')
    k('s_lshl_b32 s29, s29, 10')
    k(f's_add_u32 m0, s29, {LM}')
    k('s_lshl_b32 s32, s26, 2')
    k('buffer_load_dwordx4 v3, s[16:19], s29 offen lds')
    vm.issue(('w', 0))
    k('s_add_u32 s32, s32, s28')
    k('s_lshl_b32 s33, s32, 15')
    k('s_lshl_b32 s35, s28, 10')
    k('s_lshl_b32 s34, s27, 15')
    k('s_add_u32 s34, s34, s35')
    X0 = 16; WB = 144; MB = 180; ACC = 204
    PD = 2; NBUF = 3
    def chunk_loads(c):
        for T in range(3):
            k(f's_add_u32 m0, s35, {T*32768+c*4096}')
            k(f's_add_u32 s36, s34, {T*16*32768+c*4096}')
            k(f'buffer_load_dwordx4 v3, s[8:11], s36 offen lds')
            vm.issue(('w', c))
        for i in range(4):
            k(f'buffer_load_dwordx4 {v(X0+16*c+4*i,4)}, v3, s[12:15], s33 offen offset:{i*1024}')
            vm.issue(('x', 4 * c + i))
        k('s_add_u32 s33, s33, 4096')
    AHEAD = 4
    for c in range(AHEAD):
        chunk_loads(c)
    k('v_lshrrev_b32 v8, 5, v1')
    k('v_bfe_u32 v9, v1, 4, 1')
    k('v_lshlrev_b32 v14, 4, v8')
    k(f'v_add_u32 v14, {LM}, v14')
    k('v_add_u32 v13, 65536, v3')
    k.stamp()
    def chunk_sync(c):
        vm.wait(('w', c))
        k('s_barrier')
        if c + AHEAD < 8:
            chunk_loads(c + AHEAD)
    def reads(ks):
        w = WB + 12 * (ks % NBUF); m = MB + 8 * (ks % NBUF)
        k(f'ds_read_b128 {v(m,4)}, v14 offset:{1024+ks*32}')
        lg.issue(('m', ks))
        k(f'ds_read_b128 {v(m+4,4)}, v14 offset:{ks*32}')
        lg.issue(('m', ks))
        for T in range(3):
            base = 'v3' if T < 2 else 'v13'
            k(f'ds_read_b128 {v(w+4*T,4)}, {base} offset:{(T%2)*32768+ks*1024}')
            lg.issue(('w', ks))
    def modulate(ks):
        m = MB + 8 * (ks % NBUF)
        vm.wait(('x', ks))
        lg.wait(('m', ks))
        for j in range(4):
            xr = X0 + 4 * ks + j
            k(f'v_pk_fma_f16 {v(xr)}, {v(xr)}, {v(m+j)}, {v(m+4+j)}')
    chunk_sync(0)
    k.stamp()
    for ks in range(PD):
        reads(ks)
    modulate(0)
    for ks in range(32):
        nx = ks + PD
        if nx < 32:
            if nx % 4 == 0:
                chunk_sync(nx // 4)
                if nx % 8 == 0: k.stamp()
            reads(nx)
        if ks + 1 < 32:
            modulate(ks + 1)
        else:
            k('s_nop 1')
        lg.wait(('w', ks))
        w = WB + 12 * (ks % NBUF)
        xs = v(X0 + 4 * ks, 4)
        for T in range(3):
            acc = v(ACC + 16 * T, 16)
            c_ = acc if ks else '0'
            if T < 2:
                k(f'v_mfma_f32_32x32x16_f16 {acc}, {v(w+4*T,4)}, {xs}, {c_}')
            else:
                k(f'v_mfma_f32_32x32x16_f16 {acc}, {xs}, {v(w+4*T,4)}, {c_}')
    k.stamp()
    k('s_lshl_b32 s36, s27, 17')
    k('s_lshl_b32 s37, s32, 10')
    k('s_add_u32 s36, s36, s37')
    k('s_add_u32 s37, s36, 65536')
    k('s_add_u32 s38, s36, 0x200000')
    k('s_add_u32 s39, s37, 0x200000')
    k('v_lshlrev_b32 v15, 16, v9')
    k('v_lshl_add_u32 v15, v8, 8, v15')
    k('v_and_b32 v11, 15, v1')
    k('v_lshl_add_u32 v15, v11, 4, v15')
    k('s_add_u32 s40, s36, 0x400000')
    k('s_nop 4')
    for r in range(16):
        k(f'v_mul_f32 {v(ACC+r)}, {0.25*LOG2E}, {v(ACC+r)}')
    for r in range(8):
        k(f'v_cvt_pk_bf16_f32 {v(16+r)}, {v(ACC+2*r)}, {v(ACC+2*r+1)}')
    k('buffer_store_dwordx4 v[16:19], v3, s[20:23], s36 offen')
    k('buffer_store_dwordx4 v[20:23], v3, s[20:23], s37 offen')
    for r in range(8):
        k(f'v_cvt_pk_bf16_f32 {v(24+r)}, {v(ACC+16+2*r)}, {v(ACC+16+2*r+1)}')
    k('buffer_store_dwordx4 v[24:27], v3, s[20:23], s38 offen')
    k('buffer_store_dwordx4 v[28:31], v3, s[20:23], s39 offen')
    for r in range(8):
        k(f'v_cvt_pk_bf16_f32 {v(32+r)}, {v(ACC+32+2*r)}, {v(ACC+32+2*r+1)}')
    k('buffer_store_dwordx4 v[32:35], v15, s[20:23], s40 offen')
    k('buffer_store_dwordx4 v[36:39], v15, s[20:23], s40 offen offset:512')
    k('s_waitcnt vmcnt(0)') if PROF else None
    k.prof_end()
    k.label('qkv_end')
    k('s_endpgm')
    return k
```

```python
from fw import *
from layout import *

BARS = {5: [1], 13: [2], 21: [3, 4, 5, 6, 7]}
def gen_k3():
    LK = 0; LV = 65536; LO = 131072
    LS = 131072 + 6144
    k = Kern('attn_kernel', 256, 512, LS + 4096, 232)
    k('s_cmp_ge_u32 s2, 256')
    k('s_cbranch_scc1 attn_end')
    k.stamp()
    srds(k, [(8, 'ws', OFF_Q, 3 * 0x200000), (12, 'ws', OFF_O, 0x200000), (16, 'wg', 0, 512 * 2752), (20, 'wu', 0, 512 * 2752),
             (40, 'ws', OFF_MOD, 3072 * 4), (44, 'ws', OFF_WOT, 0x1D8000), (48, 'ws', OFF_WP, 2 * 43 * 65536), (52, 'ws', OFF_TU, 2 * 43 * 512)])
    k('s_and_b32 s56, s2, 3')
    k('s_mul_i32 s56, s56, 12')
    k('s_lshr_b32 s57, s2, 4')
    k('s_add_u32 s56, s56, s57')
    k('s_cmp_ge_u32 s57, 12')
    k('s_cselect_b32 s56, 99, s56')
    k('s_bfe_u32 s57, s2, 0x10003')
    k('s_cmp_eq_u32 s57, 1')
    k('s_cselect_b32 s16, s20, s16')
    k('s_cselect_b32 s17, s21, s17')
    k('s_bfe_u32 s58, s2, 0x10002')
    k('s_cmp_ge_u32 s56, 43')
    k('s_cselect_b32 s18, 0, s18')
    k('s_and_b32 s24, s2, 7')
    k('s_lshl_b32 s24, s24, 2')
    k('s_lshr_b32 s25, s2, 6')
    k('s_add_u32 s24, s24, s25')
    k('s_lshr_b32 s25, s2, 3')
    k('s_and_b32 s25, s25, 7')
    k('v_and_b32 v1, 63, v0')
    k('v_lshrrev_b32 v2, 6, v0')
    k('v_lshlrev_b32 v3, 4, v1')
    k('v_readfirstlane_b32 s26, v2')
    k('s_lshl_b32 s27, s25, 3')
    k('s_add_u32 s27, s27, s26')
    k('s_lshl_b32 s28, s24, 16')
    k('s_lshl_b32 s29, s27, 10')
    k('s_add_u32 s29, s29, s28')
    Q = 4; C = 8; S = [24, 40]; P = 56; O = 64; KB = [80, 84]; VB = [88, 96]
    AK, AV, SV, M, T = 104, 105, 106, 107, 108
    k(f'buffer_load_dwordx4 {v(Q,4)}, v3, s[8:11], s29 offen')
    k('s_lshl_b32 s30, s26, 10')
    k('s_add_u32 s31, s28, s30')
    k('s_add_u32 s31, s31, 0x200000')
    k('s_add_u32 s32, s31, 0x200000')
    def dma(which, p8):
        lds = (LK if which == 'K' else LV) + p8 * 8192
        sb = 's31' if which == 'K' else 's32'
        k(f's_add_u32 m0, s30, {lds}')
        k(f's_add_u32 s33, {sb}, {p8*8192}')
        k(f'buffer_load_dwordx4 v3, s[8:11], s33 offen lds')
    vm = Ctr(k, 'vmcnt', 63)
    vm.issue('q')
    for p8 in range(2):
        dma('K', p8); vm.issue(('c', p8)); dma('V', p8); vm.issue(('c', p8))
    k('v_and_b32 v109, 11, v0')
    k('v_cmp_eq_u32 vcc, 0, v109')
    k('v_mov_b32 v111, 0x3f803f80')
    k('s_nop 0')
    k('v_cndmask_b32 v110, 0, v111, vcc')
    k('v_cndmask_b32 v112, 0, v111, vcc')
    k('v_cndmask_b32 v113, 0, v111, vcc')
    k('v_cndmask_b32 v111, 0, v111, vcc')
    k('v_lshlrev_b32 v109, 4, v0')
    k('v_cmp_gt_u32 vcc, 384, v0')
    k('s_and_saveexec_b64 s[34:35], vcc')
    k(f'ds_write_b128 v109, v[110:113] offset:{LO - 65536 - 65536 + 65536}') if False else None
    k(f'v_add_u32 v109, {LO}, v109')
    k('ds_write_b128 v109, v[110:113]')
    k('s_mov_b64 exec, s[34:35]')
    k('v_lshrrev_b32 v109, 5, v1')
    k('v_and_b32 v110, 15, v1')
    k('v_lshlrev_b32 v110, 4, v110')
    k(f'v_lshl_add_u32 v111, v109, 8, v110')
    k(f'v_add_u32 v111, {LV}, v111')
    k(f'v_add_u32 v112, {LO}, v110')
    k('v_and_b32 v113, 16, v1')
    k('v_cmp_eq_u32 vcc, 0, v113')
    k('v_mov_b32 v113, 4096')
    k('s_nop 1')
    k(f'v_cndmask_b32 v114, v112, v111, vcc')
    k(f'v_cndmask_b32 {v(SV)}, 0, v113, vcc')
    k('s_mov_b32 s36, 0')
    k('s_mov_b32 s37, 1')
    k.stamp()
    PW = 120; PC = 152; PS = 184
    k('s_lshr_b32 s59, s2, 3')
    k('s_lshl_b32 s59, s59, 3')
    k('s_add_u32 s59, s59, s26')
    k('s_lshl_b32 s59, s59, 13')
    k('v_lshrrev_b32 v116, 5, v1')
    k('v_and_b32 v117, 31, v1')
    k('v_mul_u32_u24 v118, 11008, v116')
    k('v_lshl_add_u32 v118, v117, 1, v118')
    k('s_lshl_b32 s62, s56, 6')
    k(f's_mul_i32 s60, s26, {64*2752}')
    k('s_add_u32 s62, s62, s60')
    k('v_lshlrev_b32 v119, 4, v116')
    k('s_lshl_b32 s60, s26, 8')
    k(f's_add_u32 s63, s60, {1536*4}')
    k(f's_add_u32 s60, s60, {2048*4}')
    side = {t: [] for t in range(64)}
    def S_dma(which, p8):
        def f():
            dma(which, p8); vm.issue(('c', p8))
        return f
    def S_pf(i):
        def f():
            k(f'buffer_load_dwordx4 v[228:231], v3, s[44:47], s59 offen offset:{(i%4)*1024}')
            vm.issue('pf')
            if i == 3:
                k('s_add_u32 s59, s59, 4096')
        return f
    def S_g(kk, j):
        def f():
            k(f's_add_u32 s61, s62, {(16*kk+8*(j//4)+j%4)*2752}')
            k(f'buffer_load_ushort {v(PW+8*kk+j)}, v118, s[16:19], s61 offen')
            vm.issue('g')
        return f
    def S_m(kk, jq):
        def f():
            k(f'buffer_load_dwordx4 {v(PC+8*kk+4*jq,4)}, v119, s[40:43], s60 offen offset:{kk*64+jq*32}')
            k(f'buffer_load_dwordx4 {v(PS+8*kk+4*jq,4)}, v119, s[40:43], s63 offen offset:{kk*64+jq*32}')
            vm.issue('g'); vm.issue('g')
        return f
    t_ = 0
    for p8 in range(2, 8):
        side[t_].append(S_dma('K', p8)); side[t_ + 1].append(S_dma('V', p8)); t_ += 2
    for i in range(8):
        side[t_].append(S_pf(i)); t_ += 1
    for kk in range(4):
        for j in range(8):
            side[t_].append(S_g(kk, j)); t_ += 1
    for kk in range(4):
        for jq in range(2):
            side[t_].append(S_m(kk, jq)); t_ += 1
    vm.wait('q', ('c', 0))
    k('s_waitcnt lgkmcnt(0)')
    k('s_barrier')
    k.stamp()
    k.label('attn_retry')
    k(f'v_mov_b32 {v(M)}, 0xff800000')
    k(f'v_mov_b32 {v(AK)}, v3')
    k('s_mov_b32 s38, 0')
    k.label('attn_maxloop')
    k(f'ds_read_b128 {v(KB[0],4)}, {v(AK)}')
    k(f'v_add_u32 {v(AK)}, 1024, {v(AK)}')
    k('s_waitcnt lgkmcnt(0)')
    k(f'v_mfma_f32_32x32x16_bf16 {v(S[0],16)}, {v(KB[0],4)}, {v(Q,4)}, 0')
    k('s_add_u32 s38, s38, 1')
    k('s_nop 11')
    for i in range(8):
        k(f'v_max3_f32 {v(M)}, {v(S[0]+2*i)}, {v(S[0]+2*i+1)}, {v(M)}')
    k('s_cmp_lt_u32 s38, s37')
    k('s_cbranch_scc1 attn_maxloop')
    k(f'v_mov_b32 {v(T)}, {v(M)}')
    k('s_nop 1')
    k(f'v_permlane32_swap_b32 {v(M)}, {v(T)}')
    k(f'v_max_f32 {v(M)}, {v(M)}, {v(T)}')
    for i in range(16):
        k(f'v_sub_f32 {v(C+i)}, 0, {v(M)}')
    for i in range(16):
        k(f'v_mov_b32 {v(O+i)}, 0')
    k(f'v_mov_b32 {v(AK)}, v3')
    k(f'v_mov_b32 {v(AV)}, v114')
    k(f'ds_read_b128 {v(KB[0],4)}, {v(AK)}')
    k(f'ds_read_b128 {v(KB[1],4)}, {v(AK)} offset:1024')
    k(f'ds_read_b128 {v(VB[0],4)}, {v(AV)}')
    k(f'ds_read_b128 {v(VB[0]+4,4)}, {v(AV)} offset:512')
    k('s_waitcnt lgkmcnt(3)')
    k(f'v_mfma_f32_32x32x16_bf16 {v(S[0],16)}, {v(KB[0],4)}, {v(Q,4)}, {v(C,16)}')
    k('s_mov_b32 s38, 0')
    k.stamp()
    def tile(t, extra=None):
        cur = S[t % 2]; nxt = S[(t + 1) % 2]
        k('s_waitcnt lgkmcnt(2)')
        k(f'v_mfma_f32_32x32x16_bf16 {v(nxt,16)}, {v(KB[(t+1)%2],4)}, {v(Q,4)}, {v(C,16)}')
        k(f'ds_read_b128 {v(KB[t%2],4)}, {v(AK)} offset:{(t+2)*1024}')
        k(f'ds_read_b128 {v(VB[(t+1)%2],4)}, {v(AV)} offset:{(t+1)*1024}')
        k(f'ds_read_b128 {v(VB[(t+1)%2]+4,4)}, {v(AV)} offset:{(t+1)*1024+512}')
        for i in range(8):
            k(f'v_exp_f32 {v(cur+2*i)}, {v(cur+2*i)}')
            k(f'v_exp_f32 {v(cur+2*i+1)}, {v(cur+2*i+1)}')
            if i >= 1:
                k(f'v_cvt_pk_bf16_f32 {v(P+i-1)}, {v(cur+2*i-2)}, {v(cur+2*i-1)}')
            if i == 3 and extra:
                for f in extra: f()
        k('s_nop 0')
        k(f'v_cvt_pk_bf16_f32 {v(P+7)}, {v(cur+14)}, {v(cur+15)}')
        k('s_waitcnt lgkmcnt(3)')
        k('s_nop 0')
        k(f'v_mfma_f32_32x32x16_bf16 {v(O,16)}, {v(VB[t%2],4)}, {v(P,4)}, {v(O,16)}')
        k(f'v_mfma_f32_32x32x16_bf16 {v(O,16)}, {v(VB[t%2]+4,4)}, {v(P+4,4)}, {v(O,16)}')
    k('s_cmp_eq_u32 s36, 0')
    k('s_cbranch_scc1 attn_fast')
    k('s_nop 7')
    k.label('attn_loop')
    for t in range(4):
        tile(t)
    k(f'v_add_u32 {v(AK)}, 4096, {v(AK)}')
    k(f'v_add_u32 {v(AV)}, {v(SV)}, {v(AV)}')
    k('s_add_u32 s38, s38, 1')
    k('s_cmp_lt_u32 s38, 16')
    k('s_cbranch_scc1 attn_loop')
    k('s_branch attn_lend')
    k.label('attn_fast')
    lg = Ctr(k, 'lgkmcnt', 15)
    lg.issue(('k', 1)); lg.issue(('v', 0)); lg.issue(('v', 0))
    k(f'ds_read_b128 {v(KB[0],4)}, v3 offset:2048')
    lg.issue(('k', 2))
    k('s_nop 5')
    EXP = os.environ.get('EXP', '')
    def pv(t, h):
        if 'p' in EXP: return
        if 'h' in EXP and h: return
        k(f'v_mfma_f32_32x32x16_bf16 {v(O,16)}, {v(VB[t%2]+4*h,4)}, {v(P+4*h,4)}, {v(O,16)}')
    for t in range(64):
        if t in BARS:
            vm.wait(*[('c', c) for c in BARS[t]])
            k('s_barrier')
        cur = S[t % 2]; nxt = S[(t + 1) % 2]
        lg.wait(('v', t - 1), ('k', t + 1))
        for i in range(8):
            k(f'v_exp_f32 {v(cur+2*i)}, {v(cur+2*i)}')
            k(f'v_exp_f32 {v(cur+2*i+1)}, {v(cur+2*i+1)}')
            if i >= 1 and 'c' not in EXP:
                k(f'v_cvt_pk_bf16_f32 {v(P+i-1)}, {v(cur+2*i-2)}, {v(cur+2*i-1)}')
            if i == 0 and t >= 1:
                pv(t - 1, 0)
            if i == 2:
                if t >= 1:
                    pv(t - 1, 1)
                if t + 1 < 64 and 'v' not in EXP:
                    k(f'ds_read_b128 {v(VB[(t+1)%2],4)}, {v(AV)} offset:{(t%4+1)*1024}')
                    k(f'ds_read_b128 {v(VB[(t+1)%2]+4,4)}, {v(AV)} offset:{(t%4+1)*1024+512}')
                    lg.issue(('v', t + 1)); lg.issue(('v', t + 1))
            if i == 4:
                if t + 1 < 64 and 'q' not in EXP:
                    k(f'v_mfma_f32_32x32x16_bf16 {v(nxt,16)}, {v(KB[(t+1)%2],4)}, {v(Q,4)}, {v(C,16)}')
                if t + 3 < 64 and 'k' not in EXP:
                    k(f'ds_read_b128 {v(KB[(t+1)%2],4)}, v3 offset:{(t+3)*1024}')
                    lg.issue(('k', t + 3))
            if i == 6:
                for f in side[t]: f()
        k(f'v_cvt_pk_bf16_f32 {v(P+7)}, {v(cur+14)}, {v(cur+15)}')
        if t % 4 == 3:
            k(f'v_add_u32 {v(AV)}, {v(SV)}, {v(AV)}')
    lg.wait(('v', 63))
    k('s_nop 1')
    pv(63, 0); pv(63, 1)
    k.label('attn_lend')
    k('s_waitcnt lgkmcnt(0)')
    k('s_nop 11')
    k.stamp()
    k(f'v_mov_b32 {v(T)}, 0x5d800000')
    k(f'v_cmp_nle_f32 vcc, {v(O+8)}, {v(T)}')
    k('s_cmp_eq_u64 vcc, 0')
    k('s_cbranch_scc1 attn_fin')
    k('s_cmp_eq_u32 s36, 0')
    k('s_cbranch_scc0 attn_fin')
    k('s_mov_b32 s36, 1')
    k('s_mov_b32 s37, 64')
    k('s_branch attn_retry')
    k.label('attn_fin')
    k(f'v_rcp_f32 {v(T)}, {v(O+8)}')
    k('s_lshl_b32 s29, s27, 15')
    k('s_lshl_b32 s30, s24, 10')
    k('s_add_u32 s29, s29, s30')
    for i in range(8):
        k(f'v_mul_f32 {v(O+i)}, {v(O+i)}, {v(T)}')
    for i in range(4):
        k(f'v_cvt_pk_bf16_f32 {v(P+i)}, {v(O+2*i)}, {v(O+2*i+1)}')
    k(f'buffer_store_dwordx4 {v(P,4)}, v3, s[12:15], s29 offen')
    k('s_cmp_ge_u32 s56, 43')
    k('s_cbranch_scc1 attn_done')
    k('s_waitcnt vmcnt(0)')
    TT = [4, 5, 6, 7]; UU = [8, 9]; ONE = 10; OUTR = 216
    k(f'v_mov_b32 {v(ONE)}, 0x3f803f80')
    for r in TT + UU:
        k(f'v_mov_b32 {v(r)}, 0')
    k('s_mul_i32 s59, s58, 43')
    k('s_add_u32 s59, s59, s56')
    k('s_lshl_b32 s60, s59, 1')
    k('s_add_u32 s60, s60, s57')
    k('s_lshl_b32 s61, s60, 15')
    k('s_lshl_b32 s62, s26, 12')
    k('s_add_u32 s61, s61, s62')
    for kk in range(4):
        for j in range(8):
            k(f'v_lshlrev_b32 {v(PW+8*kk+j)}, 16, {v(PW+8*kk+j)}')
        for j in range(8):
            k(f'v_mul_f32 {v(PC+8*kk+j)}, {v(PC+8*kk+j)}, {v(PW+8*kk+j)}')
        for j in range(8):
            k(f'v_fmac_f32 {v(TT[j%4])}, {v(PS+8*kk+j)}, {v(PW+8*kk+j)}')
        for j in range(4):
            k(f'v_cvt_pk_bf16_f32 {v(OUTR+4*kk+j)}, {v(PC+8*kk+2*j)}, {v(PC+8*kk+2*j+1)}')
        for j in range(4):
            k(f'v_dot2_f32_bf16 {v(UU[j%2])}, {v(OUTR+4*kk+j)}, {v(ONE)}, {v(UU[j%2])}')
        k(f'buffer_store_dwordx4 {v(OUTR+4*kk,4)}, v3, s[48:51], s61 offen offset:{kk*1024}')
    k('v_add_f32 v4, v4, v5')
    k('v_add_f32 v6, v6, v7')
    k('v_add_f32 v5, v8, v9')
    k('v_add_f32 v4, v4, v6')
    k('v_lshlrev_b32 v6, 3, v0')
    k(f'v_add_u32 v6, {LS}, v6')
    k('ds_write_b64 v6, v[4:5]')
    k('s_waitcnt lgkmcnt(0)')
    k('s_barrier')
    k('s_cmp_eq_u32 s26, 0')
    k('s_cbranch_scc0 attn_done')
    k('v_and_b32 v6, 31, v1')
    k('v_lshlrev_b32 v7, 3, v6')
    k(f'v_add_u32 v7, {LS}, v7')
    for i in range(16):
        k(f'ds_read_b64 {v(16+2*i,2)}, v7 offset:{i*256}')
    k('s_waitcnt lgkmcnt(0)')
    n = 16
    while n > 1:
        for i in range(n // 2):
            k(f'v_add_f32 {v(16+2*i)}, {v(16+2*i)}, {v(16+2*i+n)}')
            k(f'v_add_f32 {v(17+2*i)}, {v(17+2*i)}, {v(17+2*i+n)}')
        n //= 2
    k('s_cmp_eq_u32 s57, 0')
    k('s_cselect_b32 s62, 0xbfb8aa3b, 1.0')
    k('v_mul_f32 v16, s62, v16')
    k('v_lshlrev_b32 v6, 2, v6')
    k('s_lshl_b32 s61, s60, 8')
    k('buffer_store_dword v16, v6, s[52:55], s61 offen')
    k('buffer_store_dword v17, v6, s[52:55], s61 offen offset:128')
    k.label('attn_done')
    k('s_waitcnt vmcnt(0)') if PROF else None
    k.prof_end()
    k.label('attn_end')
    k('s_endpgm')
    return k
```
